```python
import torch

def _softmax(x, axis=-1):
    return torch.softmax(x, dim=axis)
def _gelu(x):
    return torch.nn.functional.gelu(x, approximate="tanh")
def _silu(x):
    return torch.nn.functional.silu(x)
def _sigmoid(x):
    return torch.sigmoid(x)
def _layernorm(x, axis=-1, eps=1e-5):
    m = x.mean(dim=axis, keepdim=True)
    v = x.var(dim=axis, keepdim=True, unbiased=False)
    return (x - m) / torch.sqrt(v + eps)
def _scatter_add(tgt, idx, src, axis=0):
    return tgt.clone().index_add_(axis, idx, src)
def _segment_sum(src, seg, n):
    out = torch.zeros((n,) + src.shape[1:], dtype=src.dtype)
    return out.index_add_(0, seg, src)
def _pad(x, pw):
    flat = tuple(v for pair in reversed(pw) for v in pair)
    return torch.nn.functional.pad(x, flat)

kernel_name = 'gated_mix__ssm_conv_s4d__softmax_full_mha__prompt'

def setup_inputs():

    _w = (lambda a: (lambda t: t.to(torch.bfloat16) if t.is_floating_point() else t)(torch.as_tensor(a)))
    def _A_setup():
        Bsz, L, D, N = 1, 2048, 448, 256
        return {
            "u": _w((lambda *s: torch.randn(*s, dtype=torch.bfloat16) * 0.05)(Bsz, L, D)),
            "log_A_real": _w((lambda *s: torch.randn(*s, dtype=torch.bfloat16) * 3.2)(D, N) * 0.5),
            "A_imag": _w((lambda *s: torch.randn(*s, dtype=torch.bfloat16) * 0.05)(D, N) * 3.14),
            "C_real": _w((lambda *s: torch.randn(*s, dtype=torch.bfloat16) * 0.8)(D, N) / N ** 0.5),
            "C_imag": _w((lambda *s: torch.randn(*s, dtype=torch.bfloat16) * 0.8)(D, N) / N ** 0.5),
            "log_dt": _w((lambda *s: torch.randn(*s, dtype=torch.bfloat16) * 0.05)(D) * 0.5 - 4.0),
            "D_skip": _w((lambda *s: torch.randn(*s, dtype=torch.bfloat16) * 0.1)(D)),
        }
    _A_in = _A_setup()

    def _B_setup():
        B, S, D = 1, 2048, 448
        return {
            "x": _w((lambda *s: torch.randn(*s, dtype=torch.bfloat16) * 0.05)(B, S, D)),
            "wqkv": _w((lambda *s: torch.randn(*s, dtype=torch.bfloat16) * 0.8)(D, 3 * D)),
            "wo": _w((lambda *s: torch.randn(*s, dtype=torch.bfloat16) * 0.05)(D, D)),
        }
    _B_in = _B_setup()

    return {
        "A_u": _A_in["u"],
        "A_log_A_real": _A_in["log_A_real"],
        "A_A_imag": _A_in["A_imag"],
        "A_C_real": _A_in["C_real"],
        "A_C_imag": _A_in["C_imag"],
        "A_log_dt": _A_in["log_dt"],
        "A_D_skip": _A_in["D_skip"],
        "B_x": _B_in["x"],
        "B_wqkv": _B_in["wqkv"],
        "B_wo": _B_in["wo"],
        "gate_w": _w((lambda *s: torch.randn(*s, dtype=torch.bfloat16) * 0.05)(448) * 16.0),
    }

def reference(A_u, A_log_A_real, A_A_imag, A_C_real, A_C_imag, A_log_dt, A_D_skip, B_x, B_wqkv, B_wo, gate_w):
    def _A_ref(u, log_A_real, A_imag, C_real, C_imag, log_dt, D_skip):
        L = u.shape[1]
        dt = torch.exp(log_dt)
        A = -torch.exp(log_A_real) + 1j * A_imag
        C = (C_real + 1j * C_imag) * dt[:, None]
        pos = (lambda x, dt: x.to(dt))(torch.arange(L), log_dt.dtype)
        P = torch.exp((A * dt[:, None])[:, :, None] * pos[None, None, :])
        K = 2.0 * torch.einsum("dn,dnl->dl", C, P).real
        L2 = 2 * L
        u_t = (lambda x, *d: x.permute(*d))(u, 0, 2, 1)
        Kf = (lambda x, *a, **k: torch.fft.rfft(x.float(), *a, **k))(K, L2)
        Uf = (lambda x, *a, **k: torch.fft.rfft(x.float(), *a, **k))(u_t, L2)
        y = (lambda x, *a, **k: torch.fft.irfft(x, *a, **k).to(torch.bfloat16))(Uf * Kf[None, :, :], L2)[:, :, :L]
        y = (lambda x, *d: x.permute(*d))(y, 0, 2, 1)
        return y + u * D_skip[None, None, :]

    def _B_ref(x, wqkv, wo):
        B, S, D = x.shape
        H = 16; Dh = D // H
        qkv = (lambda x, *d: x.permute(*d))((x @ wqkv).reshape(B, S, 3, H, Dh), 2, 0, 3, 1, 4)
        q, k, v = qkv[0], qkv[1], qkv[2]
        scale = Dh ** -0.5
        scores = torch.einsum("bhqd,bhkd->bhqk", q, k) * scale
        p = _softmax(scores, axis=-1)
        o = torch.einsum("bhqk,bhkd->bhqd", p, v)
        return (lambda x, *d: x.permute(*d))(o, 0, 2, 1, 3).reshape(B, S, D) @ wo

    x = A_u
    g = _sigmoid((x * gate_w).sum(-1, keepdims=True))
    a = _A_ref(x, A_log_A_real, A_A_imag, A_C_real, A_C_imag, A_log_dt, A_D_skip)
    b = _B_ref(x, B_wqkv, B_wo)
    return g * a + (1 - g) * b
```

```python
NAME="gated_mix__ssm_conv_s4d__softmax_full_mha__prompt"
QF,KF,VF,OF,WF,GG,AY=0,0x200000,0x400000,0x600000,0x800000,0x880000,0x900000
WSN=0x1000000
class G:
    def __init__(s): s.L=[]; s.n=0
    def __call__(s,*ls):
        for l in ls:
            for x in l.split('\n'):
                x=x.strip()
                if x: s.L.append(x)
    def lab(s,p='L'): s.n+=1; return f"{p}_{s.n}"
    def srd(s,r,karg,nrec):
        s(f"s_load_dwordx2 s[{r}:{r+1}], s[0:1], {karg}")
        s.post=getattr(s,'post',[])+[f"s_mov_b32 s{r+2}, {hex(nrec)}",f"s_mov_b32 s{r+3}, 0x20000"]
    def srd_done(s):
        s("s_waitcnt lgkmcnt(0)"); s(*s.post); s.post=[]
    def text(s): return "\n".join(("" if (x.endswith(':') or x.startswith('.')) else "    ")+x for x in s.L)+"\n"
def vr(a,n): return f"v[{a}:{a+n-1}]"
def dma(g,srd,voff,soff,m0expr):
    g(m0expr,"s_nop 0",f"buffer_load_dwordx4 v{voff}, s[{srd}:{srd+3}], {soff} offen lds")

def qkv(g):
    g.srd(4,0,2048*896); g.srd(8,64,448*2688); g.srd(12,104,WSN)
    g("""s_and_b32 s16, s2, 3
    s_lshl_b32 s16, s16, 2
    s_lshr_b32 s3, s2, 3
    s_and_b32 s17, s3, 3
    s_add_u32 s16, s16, s17
    s_lshr_b32 s17, s3, 2
    s_and_b32 s3, s2, 4
    s_lshl_b32 s3, s3, 1
    s_add_u32 s17, s17, s3
    v_lshrrev_b32 v1, 6, v0
    v_and_b32 v0, 63, v0
    v_readfirstlane_b32 s18, v1""")
    g.srd_done()
    g("""v_lshrrev_b32 v10, 3, v0
    v_mul_u32_u24 v2, 896, v10
    v_lshrrev_b32 v10, 4, v0
    v_xor_b32 v10, v10, v0
    v_and_b32 v10, 7, v10
    v_lshl_add_u32 v2, v10, 4, v2
    v_xor_b32 v3, 64, v2
    v_lshrrev_b32 v10, 2, v0
    v_mul_u32_u24 v4, 2688, v10
    v_and_b32 v10, 3, v0
    v_lshl_add_u32 v4, v10, 4, v4
    s_lshl_b32 s3, s16, 2
    s_add_u32 s3, s3, s18
    s_mul_i32 s19, s3, 32*896
    s_mul_i32 s20, s18, 16*2688
    s_mul_i32 s21, s17, 56
    s_add_u32 s20, s20, s21
    s_lshl_b32 s22, s18, 12
    s_lshl_b32 s23, s18, 10
    s_add_u32 s23, s23, 32768""")
    def xdma(c):
        for j in range(4):
            g(f"s_add_u32 s24, s19, {8*j*896+c*128}")
            dma(g,4,2+(j&1),"s24",f"s_add_u32 m0, s22, {(c&1)*16384+j*1024}")
    def wdma(c):
        for sec in range(3):
            g(f"s_add_u32 s24, s20, {c*64*2688+sec*896}")
            dma(g,8,4,"s24",f"s_add_u32 m0, s23, {(c%3)*12288+sec*4096}")
    xdma(0); wdma(0); xdma(1); wdma(1)
    g("""v_and_b32 v10, 31, v0
    v_lshrrev_b32 v11, 5, v0
    v_lshrrev_b32 v12, 1, v10
    v_and_b32 v12, 7, v12
    v_xor_b32 v12, v12, v11
    v_lshlrev_b32 v12, 4, v12
    v_lshl_add_u32 v5, v10, 7, v12
    v_add_u32 v5, s22, v5
    v_xor_b32 v6, 32, v5
    v_xor_b32 v7, 64, v5
    v_xor_b32 v8, 96, v5
    v_lshlrev_b32 v9, 9, v11
    v_bfe_u32 v12, v0, 2, 2
    v_lshl_add_u32 v9, v12, 6, v9
    v_bfe_u32 v12, v0, 4, 1
    v_lshl_add_u32 v9, v12, 5, v9
    v_and_b32 v12, 3, v0
    v_lshl_add_u32 v9, v12, 3, v9
    v_add_u32 v9, 32768, v9""")
    Q,K,V,X,W=16,32,48,64,80
    def trd(c,ks):
        b=W+(ks&1)*12
        for sec in range(3):
            o=(c%3)*12288+sec*4096+ks*1024
            g(f"ds_read_b64_tr_b16 {vr(b+4*sec,2)}, v9 offset:{o}",f"ds_read_b64_tr_b16 {vr(b+4*sec+2,2)}, v9 offset:{o+256}")
    for c in range(7):
        g(f"s_waitcnt vmcnt({7 if c<6 else 0})","s_barrier")
        for ks in range(4): g(f"ds_read_b128 {vr(X+4*ks,4)}, v{5+ks} offset:{(c&1)*16384}")
        trd(c,0)
        if c+2<7: wdma(c+2)
        g("s_waitcnt lgkmcnt(6)")
        if c+2<7: xdma(c+2)
        for ks in range(4):
            if ks<3: trd(c,ks+1); g("s_waitcnt lgkmcnt(6)")
            else: g("s_waitcnt lgkmcnt(0)")
            b=W+(ks&1)*12; x=vr(X+4*ks,4); f=(c==0 and ks==0)
            g(f"v_mfma_f32_32x32x16_bf16 {vr(Q,16)}, {vr(b,4)}, {x}, {'0' if f else vr(Q,16)}")
            g(f"v_mfma_f32_32x32x16_bf16 {vr(K,16)}, {vr(b+4,4)}, {x}, {'0' if f else vr(K,16)}")
            g(f"v_mfma_f32_32x32x16_bf16 {vr(V,16)}, {x}, {vr(b+8,4)}, {'0' if f else vr(V,16)}")
    import math
    sc=28**-0.5*math.log2(math.e)
    import struct
    g(f"s_mov_b32 s25, {hex(struct.unpack('I',struct.pack('f',sc))[0])}")
    g("""s_lshl_b32 s3, s16, 2
    s_add_u32 s3, s3, s18
    s_lshl_b32 s24, s17, 6
    s_add_u32 s3, s3, s24
    s_lshl_b32 s3, s3, 11
    v_lshlrev_b32 v1, 4, v0
    v_cmp_gt_u32 s[26:27], v0, 31
    v_and_b32 v10, 31, v0
    v_cmp_gt_u32 s[28:29], v10, 27
    v_cmp_eq_u32 vcc, 28, v10
    v_mov_b32 v11, 0x3f803f80
    v_mov_b32 v12, 0x3f80
    v_mov_b32 v13, 0
    v_cndmask_b32 v14, 0, v11, vcc
    s_nop 7""")
    for i in range(16): g(f"v_mul_f32 v{Q+i}, s25, v{Q+i}")
    for i in range(8): g(f"v_cvt_pk_bf16_f32 v{X+i}, v{Q+2*i}, v{Q+2*i+1}")
    for i in range(8): g(f"v_cvt_pk_bf16_f32 v{X+8+i}, v{K+2*i}, v{K+2*i+1}")
    for i in range(8): g(f"v_cvt_pk_bf16_f32 v{W+i}, v{V+2*i}, v{V+2*i+1}")
    g(f"v_cndmask_b32 v{X+6}, v{X+6}, v13, s[26:27]",f"v_cndmask_b32 v{X+7}, v{X+7}, v13, s[26:27]")
    g(f"v_cndmask_b32 v{X+14}, v{X+14}, v11, s[26:27]",f"v_cndmask_b32 v{X+15}, v{X+15}, v12, s[26:27]")
    for i in range(8): g(f"v_cndmask_b32 v{W+i}, v{W+i}, v14, s[28:29]")
    for (base,r) in ((QF,X),(KF,X+8),(VF,W)):
        g(f"s_add_u32 s24, s3, {base}")
        g(f"buffer_store_dwordx4 {vr(r,4)}, v1, s[12:15], s24 offen",f"buffer_store_dwordx4 {vr(r+4,4)}, v1, s[12:15], s24 offen offset:1024")
    g("s_endpgm")

def misc(g):
    g.srd(4,0,2048*896); g.srd(8,80,896); g.srd(12,104,WSN); g.srd(16,72,448*896)
    g("""v_lshrrev_b32 v1, 6, v0
    v_and_b32 v0, 63, v0
    v_readfirstlane_b32 s20, v1""")
    g.srd_done()
    g("""v_lshrrev_b32 v2, 2, v0
    v_mul_u32_u24 v2, 896, v2
    v_and_b32 v3, 3, v0
    v_lshlrev_b32 v3, 4, v3
    v_add_u32 v2, v2, v3
    s_lshl_b32 s3, s2, 2
    s_add_u32 s3, s3, s20
    s_mul_i32 s21, s3, 16*896""")
    for i in range(14):
        g(f"buffer_load_dwordx4 {vr(16+4*i,4)}, v2, s[4:7], s21 offen offset:{64*i}")
        g(f"buffer_load_dwordx4 {vr(80+4*i,4)}, v3, s[8:11], 0 offen offset:{64*i}")
    g("v_lshrrev_b32 v5, 5, v0","v_and_b32 v6, 31, v0","v_lshlrev_b32 v6, 1, v6","v_mul_u32_u24 v5, 4*896, v5","v_add_u32 v5, v5, v6","v_cmp_gt_u32 vcc, v0, 31","v_mov_b32 v7, 0x40000000")
    for s_ in range(2):
        for i in range(8):
            n=(i&3)+8*(i>>2)+16*s_
            g(f"v_add_u32 v{144+8*s_+i}, {n*896}, v5")
            if s_==1 and i>=4: g(f"v_cndmask_b32 v{144+8*s_+i}, v{144+8*s_+i}, v7, vcc")
    g("v_lshlrev_b32 v8, 4, v0", "s_and_b32 s22, s20, 1","s_cmp_eq_u32 s22, 0")
    l0=g.lab(); g(f"s_cbranch_scc1 {l0}")
    for i in range(8): g(f"v_mov_b32 v{144+i}, v{152+i}")
    g(f"{l0}:")
    for it in range(4):
        skip=g.lab()
        if it==3: g("s_cmp_ge_u32 s20, 2",f"s_cbranch_scc1 {skip}")
        g(f"""s_mul_i32 s23, s2, 14
        s_add_u32 s23, s23, s20
        s_add_u32 s23, s23, {4*it}
        s_lshr_b32 s24, s23, 1
        s_and_b32 s25, s24, 15
        s_lshr_b32 s24, s24, 4
        s_mul_i32 s25, s25, 28*896
        s_lshl_b32 s24, s24, 6
        s_add_u32 s25, s25, s24
        s_lshl_b32 s23, s23, 10
        s_add_u32 s{26+it}, s23, {WF}""")
        for i in range(8):
            g(f"buffer_load_ushort v{160+8*it+i}, v{144+i}, s[16:19], s25 offen")
        g(f"{skip}:")
    g("v_mov_b32 v9, 0","s_waitcnt vmcnt(24)")
    for i in range(14):
        for k in range(4): g(f"v_dot2_f32_bf16 v9, v{16+4*i+k}, v{80+4*i+k}, v9")
    g("""s_nop 3
    v_add_f32 v9, v9, v9 quad_perm:[1,0,3,2] row_mask:0xf bank_mask:0xf
    s_nop 1
    v_add_f32 v9, v9, v9 quad_perm:[2,3,0,1] row_mask:0xf bank_mask:0xf
    v_cvt_pk_bf16_f32 v9, v9, v9
    v_and_b32 v9, 0xffff0000, v9
    v_mul_f32 v9, 0xbfb8aa3b, v9
    v_exp_f32 v9, v9
    s_nop 0
    v_add_f32 v9, 1.0, v9
    v_rcp_f32 v9, v9
    s_nop 0
    v_cvt_pk_bf16_f32 v9, v9, v9
    v_and_b32 v9, 0xffff0000, v9
    v_lshrrev_b32 v10, 2, v0
    v_lshlrev_b32 v10, 2, v10
    s_lshl_b32 s3, s3, 6""",
    f"s_add_u32 s3, s3, {GG}",
    "v_and_b32 v11, 3, v0","v_cmp_eq_u32 vcc, 0, v11","s_and_saveexec_b64 s[30:31], vcc",
    "buffer_store_dword v9, v10, s[12:15], s3 offen","s_mov_b64 exec, s[30:31]","s_waitcnt vmcnt(1)")
    for it in range(4):
        skip=g.lab()
        if it==3: g("s_cmp_ge_u32 s20, 2",f"s_cbranch_scc1 {skip}")
        for k in range(4): g(f"v_lshl_or_b32 v{16+4*it+k}, v{160+8*it+2*k+1}, 16, v{160+8*it+2*k}")
        g(f"buffer_store_dwordx4 {vr(16+4*it,4)}, v8, s[12:15], s{26+it} offen")
        g(f"{skip}:")
    g("s_endpgm")
```

```python
import sys,re
from g0 import *; from g1 import ssm; from g2 import attn,outk
def kern(name,body,vg,sg=102):
    g=G(); body(g)
    t=f".globl {name}\n.p2align 8\n.type {name},@function\n{name}:\n"+g.text()
    d=f""".amdhsa_kernel {name}
  .amdhsa_next_free_vgpr {vg}
  .amdhsa_next_free_sgpr {sg}
  .amdhsa_accum_offset {(vg+3)//4*4}
  .amdhsa_group_segment_fixed_size 0
  .amdhsa_kernarg_size 112
  .amdhsa_user_sgpr_count 2
  .amdhsa_user_sgpr_kernarg_segment_ptr 1
  .amdhsa_system_sgpr_workgroup_id_x 1
.end_amdhsa_kernel
"""
    return t,d
cnt=[0]
def roles(rs):
    def body(g):
        g.n=cnt[0]; cnt[0]+=1000
        tot=0; labs=[]
        for c,fn in rs:
            labs.append(g.lab("R")); tot+=c
            g(f"s_cmp_lt_u32 s2, {tot}",f"s_cbranch_scc1 {labs[-1]}")
        g("s_endpgm")
        base=0
        for (c,fn),l in zip(rs,labs):
            g(f"{l}:")
            if base: g(f"s_sub_u32 s2, s2, {base}")
            fn(g); base+=c
    return body,sum(c for c,_ in rs)
def build(cfg="A"):
    src=open("cdna_kernels/"+NAME+".s.ref").read()
    head=src[:src.index("; @launch")]
    head=head[:head.index("; Override launch geometry")]
    if cfg=="A": ks=[("ka",[(224,ssm),(256,qkv),(32,misc)],128 if False else 192,81920),("kb",[(256,attn)],216,65536),("kc",[(224,outk)],112,131072)]
    else: ks=[("ka",[(256,qkv),(32,misc)],192,81920),("kb",[(256,attn),(224,ssm)],216,81920),("kc",[(224,outk)],112,131072)]
    out=head; ts=[];ds=[]
    for nm,rs,vg,lds in ks:
        body,n=roles(rs); name=f"gm_{nm}_kernel"
        out+=f"; @launch kernel={name} grid=({n},1,1) block=(256,1,1) lds={lds}\n"
        t,d=kern(name,body,vg); ts.append(t); ds.append(d)
    out+='.amdgcn_target "amdgcn-amd-amdhsa--gfx950"\n.text\n'+"".join(ts)+'.section .rodata,"a"\n'+"".join(".p2align 6\n"+d for d in ds)
    return out
if __name__=="__main__":
    cfg=sys.argv[1] if len(sys.argv)>1 else "A"
    open(sys.argv[2] if len(sys.argv)>2 else "k.s","w").write(build(cfg))
```

```python
NAME="gated_mix__ssm_conv_s4d__softmax_full_mha__prompt"
QF,KF,VF,OF,WF,GG,AY=0,0x200000,0x400000,0x600000,0x800000,0x880000,0x900000
WSN=0x1000000
class G:
    def __init__(s): s.L=[]; s.n=0
    def __call__(s,*ls):
        for l in ls:
            for x in l.split('\n'):
                x=x.strip()
                if x: s.L.append(x)
    def lab(s,p='L'): s.n+=1; return f"{p}_{s.n}"
    def srd(s,r,karg,nrec):
        s(f"s_load_dwordx2 s[{r}:{r+1}], s[0:1], {karg}")
        s.post=getattr(s,'post',[])+[f"s_mov_b32 s{r+2}, {hex(nrec)}",f"s_mov_b32 s{r+3}, 0x20000"]
    def srd_done(s):
        s("s_waitcnt lgkmcnt(0)"); s(*s.post); s.post=[]
    prof=False; kid=0
    def stamp(s):
        if not G.prof: return
        s.ns=getattr(s,'ns',0); assert s.ns<16
        s(f"s_memrealtime s[{64+2*s.ns}:{65+2*s.ns}]","s_waitcnt lgkmcnt(0)"); s.ns+=1
    def end(s):
        if G.prof:
            s("s_waitcnt vmcnt(0)"); s.stamp()
            s("s_load_dwordx2 s[60:61], s[0:1], 104","s_mov_b32 s62, 0x2000000","s_mov_b32 s63, 0x20000","s_waitcnt lgkmcnt(0)",
              "v_mbcnt_lo_u32_b32 v1, -1, 0","v_mbcnt_hi_u32_b32 v1, -1, v1","v_mov_b32 v2, 0")
            for i in range(s.ns): s(f"v_mov_b32 v3, s{64+2*i}",f"v_cmp_eq_u32 vcc, {i}, v1","s_nop 1","v_cndmask_b32 v2, v2, v3, vcc")
            s("s_lshl_b32 s3, s101, 2","s_add_u32 s3, s3, s100","s_lshl_b32 s3, s3, 6",f"s_add_u32 s3, s3, {0x1000000+G.kid*0x40000}",
              "v_lshlrev_b32 v1, 2, v1","s_mov_b64 exec, 0xffff","buffer_store_dword v2, v1, s[60:63], s3 offen")
            s.ns=0
        s("s_endpgm")
    def text(s): return "\n".join(("" if (x.endswith(':') or x.startswith('.')) else "    ")+x for x in s.L)+"\n"
def vr(a,n): return f"v[{a}:{a+n-1}]"
def dma(g,srd,voff,soff,m0expr):
    g(m0expr,"s_nop 0",f"buffer_load_dwordx4 v{voff}, s[{srd}:{srd+3}], {soff} offen lds")

def qkv(g):
    g.srd(4,0,2048*896); g.srd(8,64,448*2688); g.srd(12,104,WSN)
    g("""s_and_b32 s16, s2, 3
    s_lshl_b32 s16, s16, 2
    s_lshr_b32 s3, s2, 3
    s_and_b32 s17, s3, 3
    s_add_u32 s16, s16, s17
    s_lshr_b32 s17, s3, 2
    s_and_b32 s3, s2, 4
    s_lshl_b32 s3, s3, 1
    s_add_u32 s17, s17, s3
    v_lshrrev_b32 v1, 6, v0
    v_and_b32 v0, 63, v0
    v_readfirstlane_b32 s18, v1""")
    g.srd_done()
    g("""v_lshrrev_b32 v10, 3, v0
    v_mul_u32_u24 v2, 896, v10
    v_lshrrev_b32 v10, 4, v0
    v_xor_b32 v10, v10, v0
    v_and_b32 v10, 7, v10
    v_lshl_add_u32 v2, v10, 4, v2
    v_xor_b32 v3, 64, v2
    v_lshrrev_b32 v10, 2, v0
    v_mul_u32_u24 v4, 2688, v10
    v_and_b32 v10, 3, v0
    v_lshl_add_u32 v4, v10, 4, v4
    s_lshl_b32 s3, s16, 2
    s_add_u32 s3, s3, s18
    s_mul_i32 s19, s3, 32*896
    s_mul_i32 s20, s18, 16*2688
    s_mul_i32 s21, s17, 56
    s_add_u32 s20, s20, s21
    s_lshl_b32 s22, s18, 12
    s_lshl_b32 s23, s18, 10
    s_add_u32 s23, s23, 32768""")
    def xdma(c):
        for j in range(4):
            g(f"s_add_u32 s24, s19, {8*j*896+c*128}")
            dma(g,4,2+(j&1),"s24",f"s_add_u32 m0, s22, {(c&1)*16384+j*1024}")
    def wdma(c):
        for sec in range(3):
            g(f"s_add_u32 s24, s20, {c*64*2688+sec*896}")
            dma(g,8,4,"s24",f"s_add_u32 m0, s23, {(c%3)*12288+sec*4096}")
    xdma(0); wdma(0); xdma(1); wdma(1)
    g("""v_and_b32 v10, 31, v0
    v_lshrrev_b32 v11, 5, v0
    v_lshrrev_b32 v12, 1, v10
    v_and_b32 v12, 7, v12
    v_xor_b32 v12, v12, v11
    v_lshlrev_b32 v12, 4, v12
    v_lshl_add_u32 v5, v10, 7, v12
    v_add_u32 v5, s22, v5
    v_xor_b32 v6, 32, v5
    v_xor_b32 v7, 64, v5
    v_xor_b32 v8, 96, v5
    v_lshlrev_b32 v9, 9, v11
    v_bfe_u32 v12, v0, 2, 2
    v_lshl_add_u32 v9, v12, 6, v9
    v_bfe_u32 v12, v0, 4, 1
    v_lshl_add_u32 v9, v12, 5, v9
    v_and_b32 v12, 3, v0
    v_lshl_add_u32 v9, v12, 3, v9
    v_add_u32 v9, 32768, v9""")
    Q,K,V,X,W=16,32,48,64,80
    def trd(c,ks):
        b=W+(ks&1)*12
        for sec in range(3):
            o=(c%3)*12288+sec*4096+ks*1024
            g(f"ds_read_b64_tr_b16 {vr(b+4*sec,2)}, v9 offset:{o}",f"ds_read_b64_tr_b16 {vr(b+4*sec+2,2)}, v9 offset:{o+256}")
    for c in range(7):
        if c==0: g.stamp()
        g(f"s_waitcnt vmcnt({7 if c<6 else 0})","s_barrier")
        if c in (0,1,3,6): g.stamp()
        for ks in range(4): g(f"ds_read_b128 {vr(X+4*ks,4)}, v{5+ks} offset:{(c&1)*16384}")
        trd(c,0)
        if c+2<7: wdma(c+2)
        g("s_waitcnt lgkmcnt(6)")
        if c+2<7: xdma(c+2)
        for ks in range(4):
            if ks<3: trd(c,ks+1); g("s_waitcnt lgkmcnt(6)")
            else: g("s_waitcnt lgkmcnt(0)")
            b=W+(ks&1)*12; x=vr(X+4*ks,4); f=(c==0 and ks==0)
            g(f"v_mfma_f32_32x32x16_bf16 {vr(Q,16)}, {vr(b,4)}, {x}, {'0' if f else vr(Q,16)}")
            g(f"v_mfma_f32_32x32x16_bf16 {vr(K,16)}, {vr(b+4,4)}, {x}, {'0' if f else vr(K,16)}")
            g(f"v_mfma_f32_32x32x16_bf16 {vr(V,16)}, {x}, {vr(b+8,4)}, {'0' if f else vr(V,16)}")
    g.stamp()
    import math
    sc=28**-0.5*math.log2(math.e)
    import struct
    g(f"s_mov_b32 s25, {hex(struct.unpack('I',struct.pack('f',sc))[0])}")
    g("""s_lshl_b32 s3, s16, 2
    s_add_u32 s3, s3, s18
    s_lshl_b32 s24, s17, 6
    s_add_u32 s3, s3, s24
    s_lshl_b32 s3, s3, 11
    v_lshlrev_b32 v1, 4, v0
    v_cmp_gt_u32 s[26:27], v0, 31
    v_and_b32 v10, 31, v0
    v_cmp_gt_u32 s[28:29], v10, 27
    v_cmp_eq_u32 vcc, 28, v10
    v_mov_b32 v11, 0x3f803f80
    v_mov_b32 v12, 0x3f80
    v_mov_b32 v13, 0
    v_cndmask_b32 v14, 0, v11, vcc
    s_nop 7""")
    for i in range(16): g(f"v_mul_f32 v{Q+i}, s25, v{Q+i}")
    for i in range(8): g(f"v_cvt_pk_bf16_f32 v{X+i}, v{Q+2*i}, v{Q+2*i+1}")
    for i in range(8): g(f"v_cvt_pk_bf16_f32 v{X+8+i}, v{K+2*i}, v{K+2*i+1}")
    for i in range(8): g(f"v_cvt_pk_bf16_f32 v{W+i}, v{V+2*i}, v{V+2*i+1}")
    g(f"v_cndmask_b32 v{X+6}, v{X+6}, v13, s[26:27]",f"v_cndmask_b32 v{X+7}, v{X+7}, v13, s[26:27]")
    g(f"v_cndmask_b32 v{X+14}, v{X+14}, v11, s[26:27]",f"v_cndmask_b32 v{X+15}, v{X+15}, v12, s[26:27]")
    for i in range(8): g(f"v_cndmask_b32 v{W+i}, v{W+i}, v14, s[28:29]")
    for (base,r) in ((QF,X),(KF,X+8),(VF,W)):
        g(f"s_add_u32 s24, s3, {base}")
        g(f"buffer_store_dwordx4 {vr(r,4)}, v1, s[12:15], s24 offen",f"buffer_store_dwordx4 {vr(r+4,4)}, v1, s[12:15], s24 offen offset:1024")
    g.end()

def misc(g):
    g.srd(4,0,2048*896); g.srd(8,80,896); g.srd(12,104,WSN); g.srd(16,72,448*896)
    g("""v_lshrrev_b32 v1, 6, v0
    v_and_b32 v0, 63, v0
    v_readfirstlane_b32 s20, v1""")
    g.srd_done()
    g("""v_lshrrev_b32 v2, 2, v0
    v_mul_u32_u24 v2, 896, v2
    v_and_b32 v3, 3, v0
    v_lshlrev_b32 v3, 4, v3
    v_add_u32 v2, v2, v3
    s_lshl_b32 s3, s2, 2
    s_add_u32 s3, s3, s20
    s_mul_i32 s21, s3, 16*896""")
    for i in range(14):
        g(f"buffer_load_dwordx4 {vr(16+4*i,4)}, v2, s[4:7], s21 offen offset:{64*i}")
        g(f"buffer_load_dwordx4 {vr(80+4*i,4)}, v3, s[8:11], 0 offen offset:{64*i}")
    g("v_lshrrev_b32 v5, 5, v0","v_and_b32 v6, 31, v0","v_lshlrev_b32 v6, 1, v6","v_mul_u32_u24 v5, 4*896, v5","v_add_u32 v5, v5, v6","v_cmp_gt_u32 vcc, v0, 31","v_mov_b32 v7, 0x40000000")
    for s_ in range(2):
        for i in range(8):
            n=(i&3)+8*(i>>2)+16*s_
            g(f"v_add_u32 v{144+8*s_+i}, {n*896}, v5")
            if s_==1 and i>=4: g(f"v_cndmask_b32 v{144+8*s_+i}, v{144+8*s_+i}, v7, vcc")
    g("v_lshlrev_b32 v8, 4, v0", "s_and_b32 s22, s20, 1","s_cmp_eq_u32 s22, 0")
    l0=g.lab(); g(f"s_cbranch_scc1 {l0}")
    for i in range(8): g(f"v_mov_b32 v{144+i}, v{152+i}")
    g(f"{l0}:")
    for it in range(4):
        skip=g.lab()
        if it==3: g("s_cmp_ge_u32 s20, 2",f"s_cbranch_scc1 {skip}")
        g(f"""s_mul_i32 s23, s2, 14
        s_add_u32 s23, s23, s20
        s_add_u32 s23, s23, {4*it}
        s_lshr_b32 s24, s23, 1
        s_and_b32 s25, s24, 15
        s_lshr_b32 s24, s24, 4
        s_mul_i32 s25, s25, 28*896
        s_lshl_b32 s24, s24, 6
        s_add_u32 s25, s25, s24
        s_lshl_b32 s23, s23, 10
        s_add_u32 s{26+it}, s23, {WF}""")
        for i in range(8):
            g(f"buffer_load_ushort v{160+8*it+i}, v{144+i}, s[16:19], s25 offen")
        g(f"{skip}:")
    g.stamp()
    g("v_mov_b32 v9, 0","s_waitcnt vmcnt(24)"); g.stamp()
    for i in range(14):
        for k in range(4): g(f"v_dot2_f32_bf16 v9, v{16+4*i+k}, v{80+4*i+k}, v9")
    g("""s_nop 3
    v_add_f32 v9, v9, v9 quad_perm:[1,0,3,2] row_mask:0xf bank_mask:0xf
    s_nop 1
    v_add_f32 v9, v9, v9 quad_perm:[2,3,0,1] row_mask:0xf bank_mask:0xf
    v_cvt_pk_bf16_f32 v9, v9, v9
    v_and_b32 v9, 0xffff0000, v9
    v_mul_f32 v9, 0xbfb8aa3b, v9
    v_exp_f32 v9, v9
    s_nop 0
    v_add_f32 v9, 1.0, v9
    v_rcp_f32 v9, v9
    s_nop 0
    v_cvt_pk_bf16_f32 v9, v9, v9
    v_and_b32 v9, 0xffff0000, v9
    v_lshrrev_b32 v10, 2, v0
    v_lshlrev_b32 v10, 2, v10
    s_lshl_b32 s3, s3, 6""",
    f"s_add_u32 s3, s3, {GG}",
    "v_and_b32 v11, 3, v0","v_cmp_eq_u32 vcc, 0, v11","s_and_saveexec_b64 s[30:31], vcc",
    "buffer_store_dword v9, v10, s[12:15], s3 offen","s_mov_b64 exec, s[30:31]","s_waitcnt vmcnt(1)")
    for it in range(4):
        skip=g.lab()
        if it==3: g("s_cmp_ge_u32 s20, 2",f"s_cbranch_scc1 {skip}")
        for k in range(4): g(f"v_lshl_or_b32 v{16+4*it+k}, v{160+8*it+2*k+1}, 16, v{160+8*it+2*k}")
        g(f"buffer_store_dwordx4 {vr(16+4*it,4)}, v8, s[12:15], s{26+it} offen")
        g(f"{skip}:")
    g.end()
```

```python
import sys,re
from g0 import *; from g1 import ssm1,ssm2; from g2 import attn,outk
def kern(name,body,vg,sg=102):
    g=G(); body(g)
    t=f".globl {name}\n.p2align 8\n.type {name},@function\n{name}:\n"+g.text()
    d=f""".amdhsa_kernel {name}
  .amdhsa_next_free_vgpr {vg}
  .amdhsa_next_free_sgpr {sg}
  .amdhsa_accum_offset {(vg+3)//4*4}
  .amdhsa_group_segment_fixed_size 0
  .amdhsa_kernarg_size 112
  .amdhsa_user_sgpr_count 2
  .amdhsa_user_sgpr_kernarg_segment_ptr 1
  .amdhsa_system_sgpr_workgroup_id_x 1
.end_amdhsa_kernel
"""
    return t,d
cnt=[0]; INFO=[]
def roles(rs):
    def body(g):
        g.n=cnt[0]; cnt[0]+=1000
        tot=0; labs=[]
        if G.prof: g("s_mov_b32 s101, s2","v_lshrrev_b32 v1, 6, v0","s_nop 1","v_readfirstlane_b32 s100, v1"); g.stamp(); g.pre=g.ns
        for c,fn in rs:
            labs.append(g.lab("R")); tot+=c
            g(f"s_cmp_lt_u32 s2, {tot}",f"s_cbranch_scc1 {labs[-1]}")
        g("s_endpgm")
        base=0
        for (c,fn),l in zip(rs,labs):
            g(f"{l}:")
            if G.prof: g.ns=1
            if base: g(f"s_sub_u32 s2, s2, {base}")
            n0=len(g.L); fn(g); base+=c
            if G.prof: INFO[-1].append((fn.__name__,c,1+sum('s_memrealtime' in x for x in g.L[n0:])))
    return body,sum(c for c,_ in rs)
def build(cfg="A"):
    src=open("cdna_kernels/"+NAME+".s.ref").read()
    head=src[:src.index("; @launch")]
    head=head[:head.index("; Override launch geometry")]
    if cfg=="C": ks=[("ka",[(256,qkv),(32,misc),(224,ssm)],192,81920),("kb",[(256,attn)],216,65536),("kc",[(224,outk)],112,131072)]
    elif cfg=="D": ks=[("ka",[(224,ssm1),(256,qkv),(32,misc)],192,81920),("kb",[(256,attn),(224,ssm2)],216,81920),("kc",[(224,outk)],112,131072)]
    elif cfg=="F": ks=[("ka",[(224,ssm1),(256,qkv),(32,misc)],192,81920),("kb",[(224,ssm2),(256,attn)],216,81920),("kc",[(224,outk)],112,131072)]
    elif cfg=="G": ks=[("ka",[(224,ssm1),(256,qkv)],192,81920),("kb",[(256,attn),(224,ssm2),(32,misc)],216,81920),("kc",[(224,outk)],112,131072)]
    elif cfg=="E": ks=[("ka",[(224,ssm1)],192,81920),("kq",[(256,qkv),(32,misc)],192,81920),("ks",[(224,ssm2)],216,81920),("kb",[(256,attn)],216,81920),("kc",[(224,outk)],112,131072)]
    elif cfg=="A": ks=[("ka",[(224,ssm),(256,qkv),(32,misc)],128 if False else 192,81920),("kb",[(256,attn)],216,65536),("kc",[(224,outk)],112,131072)]
    elif cfg=="S": ks=[("ks",[(224,ssm)],192,81920),("ka",[(256,qkv),(32,misc)],192,81920),("kb",[(256,attn)],216,65536),("kc",[(224,outk)],112,131072)]
    else: ks=[("ka",[(256,qkv),(32,misc)],192,81920),("kb",[(256,attn),(224,ssm)],216,81920),("kc",[(224,outk)],112,131072)]
    out=head; ts=[];ds=[]
    for nm,rs,vg,lds in ks:
        body,n=roles(rs); name=f"gm_{nm}_kernel"; G.kid=len(ts); INFO.append([])
        out+=f"; @launch kernel={name} grid=({n},1,1) block=(256,1,1) lds={lds}\n"
        t,d=kern(name,body,vg); ts.append(t); ds.append(d)
    out+='.amdgcn_target "amdgcn-amd-amdhsa--gfx950"\n.text\n'+"".join(ts)+'.section .rodata,"a"\n'+"".join(".p2align 6\n"+d for d in ds)
    return out
if __name__=="__main__":
    if len(sys.argv)>3 and sys.argv[3]=="prof": G.prof=True
    cfg=sys.argv[1] if len(sys.argv)>1 else "A"
    txt=build(cfg)
    import json; json.dump(INFO,open("roles.json","w"))
    open(sys.argv[2] if len(sys.argv)>2 else "k.s","w").write(txt)
```

```python
NAME="gated_mix__ssm_conv_s4d__softmax_full_mha__prompt"
QF,KF,VF,OF,WF,GG,AY=0,0x200000,0x400000,0x600000,0x800000,0x880000,0x900000
WSN=0x1000000
class G:
    def __init__(s): s.L=[]; s.n=0
    def __call__(s,*ls):
        for l in ls:
            for x in l.split('\n'):
                x=x.strip()
                if x: s.L.append(x)
    def lab(s,p='L'): s.n+=1; return f"{p}_{s.n}"
    def srd(s,r,karg,nrec):
        s(f"s_load_dwordx2 s[{r}:{r+1}], s[0:1], {karg}")
        s.post=getattr(s,'post',[])+[f"s_mov_b32 s{r+2}, {hex(nrec)}",f"s_mov_b32 s{r+3}, 0x20000"]
    def srd_done(s):
        s("s_waitcnt lgkmcnt(0)"); s(*s.post); s.post=[]
    prof=False; kid=0
    def stamp(s):
        if not G.prof: return
        s.ns=getattr(s,'ns',0); assert s.ns<14
        s(f"s_memrealtime s[{64+2*s.ns}:{65+2*s.ns}]","s_waitcnt lgkmcnt(0)"); s.ns+=1
    def end(s):
        if G.prof:
            s("s_waitcnt vmcnt(0)"); s.stamp()
            s("s_load_dwordx2 s[60:61], s[0:1], 104","s_mov_b32 s62, 0x2000000","s_mov_b32 s63, 0x20000","s_waitcnt lgkmcnt(0)",
              "v_mbcnt_lo_u32_b32 v1, -1, 0","v_mbcnt_hi_u32_b32 v1, -1, v1","v_mov_b32 v2, 0")
            for i in range(s.ns): s(f"v_mov_b32 v3, s{64+2*i}",f"v_cmp_eq_u32 vcc, {i}, v1","s_nop 1","v_cndmask_b32 v2, v2, v3, vcc")
            s("s_getreg_b32 s4, hwreg(HW_REG_HW_ID)","s_getreg_b32 s5, hwreg(HW_REG_XCC_ID)")
            for i,r in ((14,4),(15,5)): s(f"v_mov_b32 v3, s{r}",f"v_cmp_eq_u32 vcc, {i}, v1","s_nop 1","v_cndmask_b32 v2, v2, v3, vcc")
            s("s_lshl_b32 s3, s101, 2","s_add_u32 s3, s3, s100","s_lshl_b32 s3, s3, 6",f"s_add_u32 s3, s3, {0x1000000+G.kid*0x40000}",
              "v_lshlrev_b32 v1, 2, v1","s_mov_b64 exec, 0xffff","buffer_store_dword v2, v1, s[60:63], s3 offen")
            s.ns=0
        s("s_endpgm")
    def text(s): return "\n".join(("" if (x.endswith(':') or x.startswith('.')) else "    ")+x for x in s.L)+"\n"
def vr(a,n): return f"v[{a}:{a+n-1}]"
def dma(g,srd,voff,soff,m0expr):
    g(m0expr,"s_nop 0",f"buffer_load_dwordx4 v{voff}, s[{srd}:{srd+3}], {soff} offen lds")

def qkv(g):
    import os
    if int(os.environ.get('QP','0')): g('s_setprio %s'%os.environ['QP'])
    g.srd(4,0,2048*896); g.srd(8,64,448*2688); g.srd(12,104,WSN)
    g("""s_and_b32 s16, s2, 3
    s_lshl_b32 s16, s16, 2
    s_lshr_b32 s3, s2, 3
    s_and_b32 s17, s3, 3
    s_add_u32 s16, s16, s17
    s_lshr_b32 s17, s3, 2
    s_and_b32 s3, s2, 4
    s_lshl_b32 s3, s3, 1
    s_add_u32 s17, s17, s3
    v_lshrrev_b32 v1, 6, v0
    v_and_b32 v0, 63, v0
    v_readfirstlane_b32 s18, v1""")
    g.srd_done()
    g("""v_lshrrev_b32 v10, 3, v0
    v_mul_u32_u24 v2, 896, v10
    v_lshrrev_b32 v10, 4, v0
    v_xor_b32 v10, v10, v0
    v_and_b32 v10, 7, v10
    v_lshl_add_u32 v2, v10, 4, v2
    v_xor_b32 v3, 64, v2
    v_lshrrev_b32 v10, 2, v0
    v_mul_u32_u24 v4, 2688, v10
    v_and_b32 v10, 3, v0
    v_lshl_add_u32 v4, v10, 4, v4
    s_lshl_b32 s3, s16, 2
    s_add_u32 s3, s3, s18
    s_mul_i32 s19, s3, 32*896
    s_mul_i32 s20, s18, 16*2688
    s_mul_i32 s21, s17, 56
    s_add_u32 s20, s20, s21
    s_lshl_b32 s22, s18, 12
    s_lshl_b32 s23, s18, 10
    s_add_u32 s23, s23, 32768""")
    def xdma(c):
        for j in range(4):
            g(f"s_add_u32 s24, s19, {8*j*896+c*128}")
            dma(g,4,2+(j&1),"s24",f"s_add_u32 m0, s22, {(c&1)*16384+j*1024}")
    def wdma(c):
        for sec in range(3):
            g(f"s_add_u32 s24, s20, {c*64*2688+sec*896}")
            dma(g,8,4,"s24",f"s_add_u32 m0, s23, {(c%3)*12288+sec*4096}")
    xdma(0); wdma(0); xdma(1); wdma(1)
    g("""v_and_b32 v10, 31, v0
    v_lshrrev_b32 v11, 5, v0
    v_lshrrev_b32 v12, 1, v10
    v_and_b32 v12, 7, v12
    v_xor_b32 v12, v12, v11
    v_lshlrev_b32 v12, 4, v12
    v_lshl_add_u32 v5, v10, 7, v12
    v_add_u32 v5, s22, v5
    v_xor_b32 v6, 32, v5
    v_xor_b32 v7, 64, v5
    v_xor_b32 v8, 96, v5
    v_lshlrev_b32 v9, 9, v11
    v_bfe_u32 v12, v0, 2, 2
    v_lshl_add_u32 v9, v12, 6, v9
    v_bfe_u32 v12, v0, 4, 1
    v_lshl_add_u32 v9, v12, 5, v9
    v_and_b32 v12, 3, v0
    v_lshl_add_u32 v9, v12, 3, v9
    v_add_u32 v9, 32768, v9""")
    Q,K,V,X,W=16,32,48,64,80
    def trd(c,ks):
        b=W+(ks&1)*12
        for sec in range(3):
            o=(c%3)*12288+sec*4096+ks*1024
            g(f"ds_read_b64_tr_b16 {vr(b+4*sec,2)}, v9 offset:{o}",f"ds_read_b64_tr_b16 {vr(b+4*sec+2,2)}, v9 offset:{o+256}")
    for c in range(7):
        if c==0: g.stamp()
        g(f"s_waitcnt vmcnt({7 if c<6 else 0})","s_barrier")
        if c in (0,1,3,6): g.stamp()
        for ks in range(4): g(f"ds_read_b128 {vr(X+4*ks,4)}, v{5+ks} offset:{(c&1)*16384}")
        trd(c,0)
        if c+2<7: wdma(c+2)
        g("s_waitcnt lgkmcnt(6)")
        if c+2<7: xdma(c+2)
        for ks in range(4):
            if ks<3: trd(c,ks+1); g("s_waitcnt lgkmcnt(6)")
            else: g("s_waitcnt lgkmcnt(0)")
            b=W+(ks&1)*12; x=vr(X+4*ks,4); f=(c==0 and ks==0)
            g(f"v_mfma_f32_32x32x16_bf16 {vr(Q,16)}, {vr(b,4)}, {x}, {'0' if f else vr(Q,16)}")
            g(f"v_mfma_f32_32x32x16_bf16 {vr(K,16)}, {vr(b+4,4)}, {x}, {'0' if f else vr(K,16)}")
            g(f"v_mfma_f32_32x32x16_bf16 {vr(V,16)}, {x}, {vr(b+8,4)}, {'0' if f else vr(V,16)}")
    g.stamp()
    import math
    sc=28**-0.5*math.log2(math.e)
    import struct
    g(f"s_mov_b32 s25, {hex(struct.unpack('I',struct.pack('f',sc))[0])}")
    g("""s_lshl_b32 s3, s16, 2
    s_add_u32 s3, s3, s18
    s_lshl_b32 s24, s17, 6
    s_add_u32 s3, s3, s24
    s_lshl_b32 s3, s3, 11
    v_lshlrev_b32 v1, 4, v0
    v_cmp_gt_u32 s[26:27], v0, 31
    v_and_b32 v10, 31, v0
    v_cmp_gt_u32 s[28:29], v10, 27
    v_cmp_eq_u32 vcc, 28, v10
    v_mov_b32 v11, 0x3f803f80
    v_mov_b32 v12, 0x3f80
    v_mov_b32 v13, 0
    v_cndmask_b32 v14, 0, v11, vcc
    s_nop 7""")
    for i in range(16): g(f"v_mul_f32 v{Q+i}, s25, v{Q+i}")
    for i in range(8): g(f"v_cvt_pk_bf16_f32 v{X+i}, v{Q+2*i}, v{Q+2*i+1}")
    for i in range(8): g(f"v_cvt_pk_bf16_f32 v{X+8+i}, v{K+2*i}, v{K+2*i+1}")
    for i in range(8): g(f"v_cvt_pk_bf16_f32 v{W+i}, v{V+2*i}, v{V+2*i+1}")
    g(f"v_cndmask_b32 v{X+6}, v{X+6}, v13, s[26:27]",f"v_cndmask_b32 v{X+7}, v{X+7}, v13, s[26:27]")
    g(f"v_cndmask_b32 v{X+14}, v{X+14}, v11, s[26:27]",f"v_cndmask_b32 v{X+15}, v{X+15}, v12, s[26:27]")
    for i in range(8): g(f"v_cndmask_b32 v{W+i}, v{W+i}, v14, s[28:29]")
    for (base,r) in ((QF,X),(KF,X+8),(VF,W)):
        g(f"s_add_u32 s24, s3, {base}")
        g(f"buffer_store_dwordx4 {vr(r,4)}, v1, s[12:15], s24 offen",f"buffer_store_dwordx4 {vr(r+4,4)}, v1, s[12:15], s24 offen offset:1024")
    g.end()

def misc(g):
    import os
    if int(os.environ.get('MP','0')): g('s_setprio %s'%os.environ['MP'])
    g.srd(4,0,2048*896); g.srd(8,80,896); g.srd(12,104,WSN); g.srd(16,72,448*896)
    g("""v_lshrrev_b32 v1, 6, v0
    v_and_b32 v0, 63, v0
    v_readfirstlane_b32 s20, v1""")
    g.srd_done()
    g("""v_lshrrev_b32 v2, 2, v0
    v_mul_u32_u24 v2, 896, v2
    v_and_b32 v3, 3, v0
    v_lshlrev_b32 v3, 4, v3
    v_add_u32 v2, v2, v3
    s_lshl_b32 s3, s2, 2
    s_add_u32 s3, s3, s20
    s_mul_i32 s21, s3, 16*896""")
    for i in range(14):
        g(f"buffer_load_dwordx4 {vr(16+4*i,4)}, v2, s[4:7], s21 offen offset:{64*i}")
        g(f"buffer_load_dwordx4 {vr(80+4*i,4)}, v3, s[8:11], 0 offen offset:{64*i}")
    g("v_lshrrev_b32 v5, 5, v0","v_and_b32 v6, 31, v0","v_lshlrev_b32 v6, 1, v6","v_mul_u32_u24 v5, 4*896, v5","v_add_u32 v5, v5, v6","v_cmp_gt_u32 vcc, v0, 31","v_mov_b32 v7, 0x40000000")
    for s_ in range(2):
        for i in range(8):
            n=(i&3)+8*(i>>2)+16*s_
            g(f"v_add_u32 v{144+8*s_+i}, {n*896}, v5")
            if s_==1 and i>=4: g(f"v_cndmask_b32 v{144+8*s_+i}, v{144+8*s_+i}, v7, vcc")
    g("v_lshlrev_b32 v8, 4, v0", "s_and_b32 s22, s20, 1","s_cmp_eq_u32 s22, 0")
    l0=g.lab(); g(f"s_cbranch_scc1 {l0}")
    for i in range(8): g(f"v_mov_b32 v{144+i}, v{152+i}")
    g(f"{l0}:")
    for it in range(4):
        skip=g.lab()
        if it==3: g("s_cmp_ge_u32 s20, 2",f"s_cbranch_scc1 {skip}")
        g(f"""s_mul_i32 s23, s2, 14
        s_add_u32 s23, s23, s20
        s_add_u32 s23, s23, {4*it}
        s_lshr_b32 s24, s23, 1
        s_and_b32 s25, s24, 15
        s_lshr_b32 s24, s24, 4
        s_mul_i32 s25, s25, 28*896
        s_lshl_b32 s24, s24, 6
        s_add_u32 s25, s25, s24
        s_lshl_b32 s23, s23, 10
        s_add_u32 s{26+it}, s23, {WF}""")
        for i in range(8):
            g(f"buffer_load_ushort v{160+8*it+i}, v{144+i}, s[16:19], s25 offen")
        g(f"{skip}:")
    g.stamp()
    g("v_mov_b32 v9, 0","s_waitcnt vmcnt(24)"); g.stamp()
    for i in range(14):
        for k in range(4): g(f"v_dot2_f32_bf16 v9, v{16+4*i+k}, v{80+4*i+k}, v9")
    g("""s_nop 3
    v_add_f32 v9, v9, v9 quad_perm:[1,0,3,2] row_mask:0xf bank_mask:0xf
    s_nop 1
    v_add_f32 v9, v9, v9 quad_perm:[2,3,0,1] row_mask:0xf bank_mask:0xf
    v_cvt_pk_bf16_f32 v9, v9, v9
    v_and_b32 v9, 0xffff0000, v9
    v_mul_f32 v9, 0xbfb8aa3b, v9
    v_exp_f32 v9, v9
    s_nop 0
    v_add_f32 v9, 1.0, v9
    v_rcp_f32 v9, v9
    s_nop 0
    v_cvt_pk_bf16_f32 v9, v9, v9
    v_and_b32 v9, 0xffff0000, v9
    v_lshrrev_b32 v10, 2, v0
    v_lshlrev_b32 v10, 2, v10
    s_lshl_b32 s3, s3, 6""",
    f"s_add_u32 s3, s3, {GG}",
    "v_and_b32 v11, 3, v0","v_cmp_eq_u32 vcc, 0, v11","s_and_saveexec_b64 s[30:31], vcc",
    "buffer_store_dword v9, v10, s[12:15], s3 offen","s_mov_b64 exec, s[30:31]","s_waitcnt vmcnt(1)")
    for it in range(4):
        skip=g.lab()
        if it==3: g("s_cmp_ge_u32 s20, 2",f"s_cbranch_scc1 {skip}")
        for k in range(4): g(f"v_lshl_or_b32 v{16+4*it+k}, v{160+8*it+2*k+1}, 16, v{160+8*it+2*k}")
        g(f"buffer_store_dwordx4 {vr(16+4*it,4)}, v8, s[12:15], s{26+it} offen")
        g(f"{skip}:")
    g.end()
```

```python
NAME="gated_mix__ssm_conv_s4d__softmax_full_mha__prompt"
QF,KF,VF,OF,WF,GG,AY=0,0x200000,0x400000,0x600000,0x800000,0x880000,0x900000
WSN=0x1000000
class G:
    def __init__(s): s.L=[]; s.n=0
    def __call__(s,*ls):
        for l in ls:
            for x in l.split('\n'):
                x=x.strip()
                if x: s.L.append(x)
    def lab(s,p='L'): s.n+=1; return f"{p}_{s.n}"
    def srd(s,r,karg,nrec):
        s(f"s_load_dwordx2 s[{r}:{r+1}], s[0:1], {karg}")
        s.post=getattr(s,'post',[])+[f"s_mov_b32 s{r+2}, {hex(nrec)}",f"s_mov_b32 s{r+3}, 0x20000"]
    def srd_done(s):
        s("s_waitcnt lgkmcnt(0)"); s(*s.post); s.post=[]
    prof=False; kid=0
    def stamp(s):
        if not G.prof: return
        s.ns=getattr(s,'ns',0); assert s.ns<14
        s(f"s_memrealtime s[{64+2*s.ns}:{65+2*s.ns}]","s_waitcnt lgkmcnt(0)"); s.ns+=1
    def end(s):
        if G.prof:
            s("s_waitcnt vmcnt(0)"); s.stamp()
            s("s_load_dwordx2 s[60:61], s[0:1], 104","s_mov_b32 s62, 0x2000000","s_mov_b32 s63, 0x20000","s_waitcnt lgkmcnt(0)",
              "v_mbcnt_lo_u32_b32 v1, -1, 0","v_mbcnt_hi_u32_b32 v1, -1, v1","v_mov_b32 v2, 0")
            for i in range(s.ns): s(f"v_mov_b32 v3, s{64+2*i}",f"v_cmp_eq_u32 vcc, {i}, v1","s_nop 1","v_cndmask_b32 v2, v2, v3, vcc")
            s("s_getreg_b32 s4, hwreg(HW_REG_HW_ID)","s_getreg_b32 s5, hwreg(HW_REG_XCC_ID)")
            for i,r in ((14,4),(15,5)): s(f"v_mov_b32 v3, s{r}",f"v_cmp_eq_u32 vcc, {i}, v1","s_nop 1","v_cndmask_b32 v2, v2, v3, vcc")
            s("s_lshl_b32 s3, s101, 2","s_add_u32 s3, s3, s100","s_lshl_b32 s3, s3, 6",f"s_add_u32 s3, s3, {0x1000000+G.kid*0x40000}",
              "v_lshlrev_b32 v1, 2, v1","s_mov_b64 exec, 0xffff","buffer_store_dword v2, v1, s[60:63], s3 offen")
            s.ns=0
        s("s_endpgm")
    def text(s): return "\n".join(("" if (x.endswith(':') or x.startswith('.')) else "    ")+x for x in s.L)+"\n"
def vr(a,n): return f"v[{a}:{a+n-1}]"
def dma(g,srd,voff,soff,m0expr):
    g(m0expr,"s_nop 0",f"buffer_load_dwordx4 v{voff}, s[{srd}:{srd+3}], {soff} offen lds")

def qkv(g):
    import os
    if int(os.environ.get('QP','0')): g('s_setprio %s'%os.environ['QP'])
    g.srd(4,0,2048*896); g.srd(8,64,448*2688); g.srd(12,104,WSN)
    g("""s_and_b32 s16, s2, 3
    s_lshl_b32 s16, s16, 2
    s_lshr_b32 s3, s2, 3
    s_and_b32 s17, s3, 3
    s_add_u32 s16, s16, s17
    s_lshr_b32 s17, s3, 2
    s_and_b32 s3, s2, 4
    s_lshl_b32 s3, s3, 1
    s_add_u32 s17, s17, s3
    v_lshrrev_b32 v1, 6, v0
    v_and_b32 v0, 63, v0
    v_readfirstlane_b32 s18, v1""")
    g.srd_done()
    g("""v_lshrrev_b32 v10, 3, v0
    v_mul_u32_u24 v2, 896, v10
    v_lshrrev_b32 v10, 4, v0
    v_xor_b32 v10, v10, v0
    v_and_b32 v10, 7, v10
    v_lshl_add_u32 v2, v10, 4, v2
    v_xor_b32 v3, 64, v2
    v_lshrrev_b32 v10, 2, v0
    v_mul_u32_u24 v4, 2688, v10
    v_and_b32 v10, 3, v0
    v_lshl_add_u32 v4, v10, 4, v4
    s_lshl_b32 s3, s16, 2
    s_add_u32 s3, s3, s18
    s_mul_i32 s19, s3, 32*896
    s_mul_i32 s20, s18, 16*2688
    s_mul_i32 s21, s17, 56
    s_add_u32 s20, s20, s21
    s_lshl_b32 s22, s18, 12
    s_lshl_b32 s23, s18, 10
    s_add_u32 s23, s23, 32768""")
    def xdma(c):
        for j in range(4):
            g(f"s_add_u32 s24, s19, {8*j*896+c*128}")
            dma(g,4,2+(j&1),"s24",f"s_add_u32 m0, s22, {(c&1)*16384+j*1024}")
    def wdma(c):
        for sec in range(3):
            g(f"s_add_u32 s24, s20, {c*64*2688+sec*896}")
            dma(g,8,4,"s24",f"s_add_u32 m0, s23, {(c%3)*12288+sec*4096}")
    xdma(0); wdma(0); xdma(1); wdma(1)
    TA=int(os.environ.get('TA','0'))
    if TA:
        g(f"""v_lshl_add_u32 v10, v1, 6, v0
        v_mul_u32_u24 v11, 205, v10
        v_lshrrev_b32 v11, 14, v11
        v_mul_u32_u24 v12, 80, v11
        v_sub_u32 v12, v10, v12
        v_mul_u32_u24 v12, 2688, v12
        v_mul_u32_u24 v13, 896, v11
        v_add_u32 v12, v12, v13
        v_cmp_eq_u32 vcc, 3, v11
        v_mov_b32 v13, 0x40000000
        v_cndmask_b32 v12, v12, v13, vcc
        s_and_b32 s24, s16, 3
        s_mul_i32 s24, s24, {80*2688}
        s_add_u32 s24, s24, s21
        s_add_u32 s24, s24, {128*2688}
        v_and_b32 v11, 15, v10
        v_mul_u32_u24 v11, 896, v11
        buffer_load_dword v14, v12, s[8:11], s24 offen
        buffer_load_dword v15, v12, s[8:11], s24 offen offset:60
        v_lshrrev_b32 v12, 4, v10
        v_lshl_add_u32 v11, v12, 7, v11
        v_cmp_gt_u32 vcc, 80, v10
        v_cndmask_b32 v11, v13, v11, vcc
        s_and_b32 s24, s17, 7
        s_lshl_b32 s24, s24, 4
        s_lshl_b32 s25, s16, 7
        s_add_u32 s24, s24, s25
        s_mul_i32 s24, s24, 896
        s_add_u32 s24, s24, 256
        buffer_load_dword v13, v11, s[4:7], s24 offen""")
    g("""v_and_b32 v10, 31, v0
    v_lshrrev_b32 v11, 5, v0
    v_lshrrev_b32 v12, 1, v10
    v_and_b32 v12, 7, v12
    v_xor_b32 v12, v12, v11
    v_lshlrev_b32 v12, 4, v12
    v_lshl_add_u32 v5, v10, 7, v12
    v_add_u32 v5, s22, v5
    v_xor_b32 v6, 32, v5
    v_xor_b32 v7, 64, v5
    v_xor_b32 v8, 96, v5
    v_lshlrev_b32 v9, 9, v11
    v_bfe_u32 v12, v0, 2, 2
    v_lshl_add_u32 v9, v12, 6, v9
    v_bfe_u32 v12, v0, 4, 1
    v_lshl_add_u32 v9, v12, 5, v9
    v_and_b32 v12, 3, v0
    v_lshl_add_u32 v9, v12, 3, v9
    v_add_u32 v9, 32768, v9""")
    Q,K,V,X,W=16,32,48,64,80
    def trd(c,ks):
        b=W+(ks&1)*12
        for sec in range(3):
            o=(c%3)*12288+sec*4096+ks*1024
            g(f"ds_read_b64_tr_b16 {vr(b+4*sec,2)}, v9 offset:{o}",f"ds_read_b64_tr_b16 {vr(b+4*sec+2,2)}, v9 offset:{o+256}")
    for c in range(7):
        if c==0: g.stamp()
        g(f"s_waitcnt vmcnt({(10 if (TA and c<2) else 7) if c<6 else 0})","s_barrier")
        if c in (0,1,3,6): g.stamp()
        for ks in range(4): g(f"ds_read_b128 {vr(X+4*ks,4)}, v{5+ks} offset:{(c&1)*16384}")
        trd(c,0)
        if c+2<7: wdma(c+2)
        g("s_waitcnt lgkmcnt(6)")
        if c+2<7: xdma(c+2)
        for ks in range(4):
            if ks<3: trd(c,ks+1); g("s_waitcnt lgkmcnt(6)")
            else: g("s_waitcnt lgkmcnt(0)")
            b=W+(ks&1)*12; x=vr(X+4*ks,4); f=(c==0 and ks==0)
            g(f"v_mfma_f32_32x32x16_bf16 {vr(Q,16)}, {vr(b,4)}, {x}, {'0' if f else vr(Q,16)}")
            g(f"v_mfma_f32_32x32x16_bf16 {vr(K,16)}, {vr(b+4,4)}, {x}, {'0' if f else vr(K,16)}")
            g(f"v_mfma_f32_32x32x16_bf16 {vr(V,16)}, {x}, {vr(b+8,4)}, {'0' if f else vr(V,16)}")
    g.stamp()
    import math
    sc=28**-0.5*math.log2(math.e)
    import struct
    g(f"s_mov_b32 s25, {hex(struct.unpack('I',struct.pack('f',sc))[0])}")
    g("""s_lshl_b32 s3, s16, 2
    s_add_u32 s3, s3, s18
    s_lshl_b32 s24, s17, 6
    s_add_u32 s3, s3, s24
    s_lshl_b32 s3, s3, 11
    v_lshlrev_b32 v1, 4, v0
    v_cmp_gt_u32 s[26:27], v0, 31
    v_and_b32 v10, 31, v0
    v_cmp_gt_u32 s[28:29], v10, 27
    v_cmp_eq_u32 vcc, 28, v10
    v_mov_b32 v11, 0x3f803f80
    v_mov_b32 v12, 0x3f80
    v_mov_b32 v13, 0
    v_cndmask_b32 v14, 0, v11, vcc
    s_nop 7""")
    for i in range(16): g(f"v_mul_f32 v{Q+i}, s25, v{Q+i}")
    for i in range(8): g(f"v_cvt_pk_bf16_f32 v{X+i}, v{Q+2*i}, v{Q+2*i+1}")
    for i in range(8): g(f"v_cvt_pk_bf16_f32 v{X+8+i}, v{K+2*i}, v{K+2*i+1}")
    for i in range(8): g(f"v_cvt_pk_bf16_f32 v{W+i}, v{V+2*i}, v{V+2*i+1}")
    g(f"v_cndmask_b32 v{X+6}, v{X+6}, v13, s[26:27]",f"v_cndmask_b32 v{X+7}, v{X+7}, v13, s[26:27]")
    g(f"v_cndmask_b32 v{X+14}, v{X+14}, v11, s[26:27]",f"v_cndmask_b32 v{X+15}, v{X+15}, v12, s[26:27]")
    for i in range(8): g(f"v_cndmask_b32 v{W+i}, v{W+i}, v14, s[28:29]")
    for (base,r) in ((QF,X),(KF,X+8),(VF,W)):
        g(f"s_add_u32 s24, s3, {base}")
        g(f"buffer_store_dwordx4 {vr(r,4)}, v1, s[12:15], s24 offen",f"buffer_store_dwordx4 {vr(r+4,4)}, v1, s[12:15], s24 offen offset:1024")
    g.end()

def misc(g):
    import os
    if int(os.environ.get('MP','0')): g('s_setprio %s'%os.environ['MP'])
    g.srd(4,0,2048*896); g.srd(8,80,896); g.srd(12,104,WSN); g.srd(16,72,448*896)
    g("""v_lshrrev_b32 v1, 6, v0
    v_and_b32 v0, 63, v0
    v_readfirstlane_b32 s20, v1""")
    g.srd_done()
    g("""v_lshrrev_b32 v2, 2, v0
    v_mul_u32_u24 v2, 896, v2
    v_and_b32 v3, 3, v0
    v_lshlrev_b32 v3, 4, v3
    v_add_u32 v2, v2, v3
    s_lshl_b32 s3, s2, 2
    s_add_u32 s3, s3, s20
    s_mul_i32 s21, s3, 16*896""")
    for i in range(14):
        g(f"buffer_load_dwordx4 {vr(16+4*i,4)}, v2, s[4:7], s21 offen offset:{64*i}")
        g(f"buffer_load_dwordx4 {vr(80+4*i,4)}, v3, s[8:11], 0 offen offset:{64*i}")
    g("v_lshrrev_b32 v5, 5, v0","v_and_b32 v6, 31, v0","v_lshlrev_b32 v6, 1, v6","v_mul_u32_u24 v5, 4*896, v5","v_add_u32 v5, v5, v6","v_cmp_gt_u32 vcc, v0, 31","v_mov_b32 v7, 0x40000000")
    for s_ in range(2):
        for i in range(8):
            n=(i&3)+8*(i>>2)+16*s_
            g(f"v_add_u32 v{144+8*s_+i}, {n*896}, v5")
            if s_==1 and i>=4: g(f"v_cndmask_b32 v{144+8*s_+i}, v{144+8*s_+i}, v7, vcc")
    g("v_lshlrev_b32 v8, 4, v0", "s_and_b32 s22, s20, 1","s_cmp_eq_u32 s22, 0")
    l0=g.lab(); g(f"s_cbranch_scc1 {l0}")
    for i in range(8): g(f"v_mov_b32 v{144+i}, v{152+i}")
    g(f"{l0}:")
    for it in range(4):
        skip=g.lab()
        if it==3: g("s_cmp_ge_u32 s20, 2",f"s_cbranch_scc1 {skip}")
        g(f"""s_mul_i32 s23, s2, 14
        s_add_u32 s23, s23, s20
        s_add_u32 s23, s23, {4*it}
        s_lshr_b32 s24, s23, 1
        s_and_b32 s25, s24, 15
        s_lshr_b32 s24, s24, 4
        s_mul_i32 s25, s25, 28*896
        s_lshl_b32 s24, s24, 6
        s_add_u32 s25, s25, s24
        s_lshl_b32 s23, s23, 10
        s_add_u32 s{26+it}, s23, {WF}""")
        for i in range(8):
            g(f"buffer_load_ushort v{160+8*it+i}, v{144+i}, s[16:19], s25 offen")
        g(f"{skip}:")
    g.stamp()
    g("v_mov_b32 v9, 0","s_waitcnt vmcnt(24)"); g.stamp()
    for i in range(14):
        for k in range(4): g(f"v_dot2_f32_bf16 v9, v{16+4*i+k}, v{80+4*i+k}, v9")
    g("""s_nop 3
    v_add_f32 v9, v9, v9 quad_perm:[1,0,3,2] row_mask:0xf bank_mask:0xf
    s_nop 1
    v_add_f32 v9, v9, v9 quad_perm:[2,3,0,1] row_mask:0xf bank_mask:0xf
    v_cvt_pk_bf16_f32 v9, v9, v9
    v_and_b32 v9, 0xffff0000, v9
    v_mul_f32 v9, 0xbfb8aa3b, v9
    v_exp_f32 v9, v9
    s_nop 0
    v_add_f32 v9, 1.0, v9
    v_rcp_f32 v9, v9
    s_nop 0
    v_cvt_pk_bf16_f32 v9, v9, v9
    v_and_b32 v9, 0xffff0000, v9
    v_lshrrev_b32 v10, 2, v0
    v_lshlrev_b32 v10, 2, v10
    s_lshl_b32 s3, s3, 6""",
    f"s_add_u32 s3, s3, {GG}",
    "v_and_b32 v11, 3, v0","v_cmp_eq_u32 vcc, 0, v11","s_and_saveexec_b64 s[30:31], vcc",
    "buffer_store_dword v9, v10, s[12:15], s3 offen","s_mov_b64 exec, s[30:31]","s_waitcnt vmcnt(1)")
    for it in range(4):
        skip=g.lab()
        if it==3: g("s_cmp_ge_u32 s20, 2",f"s_cbranch_scc1 {skip}")
        for k in range(4): g(f"v_lshl_or_b32 v{16+4*it+k}, v{160+8*it+2*k+1}, 16, v{160+8*it+2*k}")
        g(f"buffer_store_dwordx4 {vr(16+4*it,4)}, v8, s[12:15], s{26+it} offen")
        g(f"{skip}:")
    g.end()
```

```python
NAME="gated_mix__ssm_conv_s4d__softmax_full_mha__prompt"
QF,KF,VF,OF,WF,GG,AY=0,0x200000,0x400000,0x600000,0x800000,0x880000,0x900000
WSN=0x1000000
class G:
    def __init__(s): s.L=[]; s.n=0
    def __call__(s,*ls):
        for l in ls:
            for x in l.split('\n'):
                x=x.strip()
                if x: s.L.append(x)
    def lab(s,p='L'): s.n+=1; return f"{p}_{s.n}"
    def srd(s,r,karg,nrec):
        s(f"s_load_dwordx2 s[{r}:{r+1}], s[0:1], {karg}")
        s.post=getattr(s,'post',[])+[f"s_mov_b32 s{r+2}, {hex(nrec)}",f"s_mov_b32 s{r+3}, 0x20000"]
    def srd_done(s):
        s("s_waitcnt lgkmcnt(0)"); s(*s.post); s.post=[]
    prof=False; kid=0
    def stamp(s):
        if not G.prof: return
        s.ns=getattr(s,'ns',0); assert s.ns<14
        s(f"s_memrealtime s[{64+2*s.ns}:{65+2*s.ns}]","s_waitcnt lgkmcnt(0)"); s.ns+=1
    def end(s):
        if G.prof:
            s("s_waitcnt vmcnt(0)"); s.stamp()
            s("s_load_dwordx2 s[60:61], s[0:1], 104","s_mov_b32 s62, 0x2000000","s_mov_b32 s63, 0x20000","s_waitcnt lgkmcnt(0)",
              "v_mbcnt_lo_u32_b32 v1, -1, 0","v_mbcnt_hi_u32_b32 v1, -1, v1","v_mov_b32 v2, 0")
            for i in range(s.ns): s(f"v_mov_b32 v3, s{64+2*i}",f"v_cmp_eq_u32 vcc, {i}, v1","s_nop 1","v_cndmask_b32 v2, v2, v3, vcc")
            s("s_getreg_b32 s4, hwreg(HW_REG_HW_ID)","s_getreg_b32 s5, hwreg(HW_REG_XCC_ID)")
            for i,r in ((14,4),(15,5)): s(f"v_mov_b32 v3, s{r}",f"v_cmp_eq_u32 vcc, {i}, v1","s_nop 1","v_cndmask_b32 v2, v2, v3, vcc")
            s("s_lshl_b32 s3, s101, 2","s_add_u32 s3, s3, s100","s_lshl_b32 s3, s3, 6",f"s_add_u32 s3, s3, {0x1000000+G.kid*0x40000}",
              "v_lshlrev_b32 v1, 2, v1","s_mov_b64 exec, 0xffff","buffer_store_dword v2, v1, s[60:63], s3 offen")
            s.ns=0
        s("s_endpgm")
    def text(s): return "\n".join(("" if (x.endswith(':') or x.startswith('.')) else "    ")+x for x in s.L)+"\n"
def vr(a,n): return f"v[{a}:{a+n-1}]"
def dma(g,srd,voff,soff,m0expr):
    g(m0expr,"s_nop 0",f"buffer_load_dwordx4 v{voff}, s[{srd}:{srd+3}], {soff} offen lds")

def remap(d,s,t):
    return f"""s_and_b32 {d}, {s}, 3
    s_lshl_b32 {d}, {d}, 3
    s_and_b32 {t}, {s}, 4
    s_or_b32 {d}, {d}, {t}
    s_bfe_u32 {t}, {s}, 0x20003
    s_or_b32 {d}, {d}, {t}"""
def qkv(g):
    import os
    if int(os.environ.get('QP','0')): g('s_setprio %s'%os.environ['QP'])
    g.srd(4,0,2048*896); g.srd(8,64,448*2688); g.srd(12,104,WSN)
    g("""s_and_b32 s16, s2, 3
    s_lshl_b32 s16, s16, 2
    s_lshr_b32 s3, s2, 3
    s_and_b32 s17, s3, 3
    s_add_u32 s16, s16, s17
    s_lshr_b32 s17, s3, 2
    s_and_b32 s3, s2, 4
    s_lshl_b32 s3, s3, 1
    s_add_u32 s17, s17, s3
    v_lshrrev_b32 v1, 6, v0
    v_and_b32 v0, 63, v0
    v_readfirstlane_b32 s18, v1""")
    g.srd_done()
    g("""v_lshrrev_b32 v10, 3, v0
    v_mul_u32_u24 v2, 896, v10
    v_lshrrev_b32 v10, 4, v0
    v_xor_b32 v10, v10, v0
    v_and_b32 v10, 7, v10
    v_lshl_add_u32 v2, v10, 4, v2
    v_xor_b32 v3, 64, v2
    v_lshrrev_b32 v10, 2, v0
    v_mul_u32_u24 v4, 2688, v10
    v_and_b32 v10, 3, v0
    v_lshl_add_u32 v4, v10, 4, v4
    s_lshl_b32 s3, s16, 2
    s_add_u32 s3, s3, s18
    s_mul_i32 s19, s3, 32*896
    s_mul_i32 s20, s18, 16*2688
    s_mul_i32 s21, s17, 56
    s_add_u32 s20, s20, s21
    s_lshl_b32 s22, s18, 12
    s_lshl_b32 s23, s18, 10
    s_add_u32 s23, s23, 32768""")
    def xdma(c):
        for j in range(4):
            g(f"s_add_u32 s24, s19, {8*j*896+c*128}")
            dma(g,4,2+(j&1),"s24",f"s_add_u32 m0, s22, {(c&1)*16384+j*1024}")
    def wdma(c):
        for sec in range(3):
            g(f"s_add_u32 s24, s20, {c*64*2688+sec*896}")
            dma(g,8,4,"s24",f"s_add_u32 m0, s23, {(c%3)*12288+sec*4096}")
    xdma(0); wdma(0); xdma(1); wdma(1)
    TA=int(os.environ.get('TA','0'))
    def touch():
        l3=g.lab(); ld=g.lab()
        g("s_cmp_eq_u32 s18, 3",f"s_cbranch_scc1 {l3}")
        g(f"""v_mul_u32_u24 v12, 2688, v0
        s_and_b32 s24, s16, 3
        s_mul_i32 s24, s24, {64*2688}
        s_add_u32 s24, s24, s21
        s_mul_i32 s25, s18, 896
        s_add_u32 s24, s24, s25
        s_add_u32 s24, s24, {192*2688}
        buffer_load_dword v14, v12, s[8:11], s24 offen
        buffer_load_dword v15, v12, s[8:11], s24 offen offset:60
        s_branch {ld}
        {l3}:
        v_and_b32 v11, 15, v0
        v_mul_u32_u24 v11, 896, v11
        v_lshrrev_b32 v12, 4, v0
        v_lshl_add_u32 v11, v12, 7, v11
        s_and_b32 s24, s17, 7
        s_lshl_b32 s24, s24, 4
        s_lshl_b32 s25, s16, 7
        s_add_u32 s24, s24, s25
        s_mul_i32 s24, s24, 896
        s_add_u32 s24, s24, 384
        buffer_load_dword v14, v11, s[4:7], s24 offen
        buffer_load_dword v15, v11, s[4:7], s24 offen offset:64
        {ld}:""")
    g("""v_and_b32 v10, 31, v0
    v_lshrrev_b32 v11, 5, v0
    v_lshrrev_b32 v12, 1, v10
    v_and_b32 v12, 7, v12
    v_xor_b32 v12, v12, v11
    v_lshlrev_b32 v12, 4, v12
    v_lshl_add_u32 v5, v10, 7, v12
    v_add_u32 v5, s22, v5
    v_xor_b32 v6, 32, v5
    v_xor_b32 v7, 64, v5
    v_xor_b32 v8, 96, v5
    v_lshlrev_b32 v9, 9, v11
    v_bfe_u32 v12, v0, 2, 2
    v_lshl_add_u32 v9, v12, 6, v9
    v_bfe_u32 v12, v0, 4, 1
    v_lshl_add_u32 v9, v12, 5, v9
    v_and_b32 v12, 3, v0
    v_lshl_add_u32 v9, v12, 3, v9
    v_add_u32 v9, 32768, v9""")
    Q,K,V,X,W=16,32,48,64,80
    def trd(c,ks):
        b=W+(ks&1)*12
        for sec in range(3):
            o=(c%3)*12288+sec*4096+ks*1024
            g(f"ds_read_b64_tr_b16 {vr(b+4*sec,2)}, v9 offset:{o}",f"ds_read_b64_tr_b16 {vr(b+4*sec+2,2)}, v9 offset:{o+256}")
    for c in range(7):
        if c==0: g.stamp()
        g(f"s_waitcnt vmcnt({(9 if (TA and c in (1,2)) else 7) if c<6 else 0})","s_barrier")
        if c in (0,1,3,6): g.stamp()
        for ks in range(4): g(f"ds_read_b128 {vr(X+4*ks,4)}, v{5+ks} offset:{(c&1)*16384}")
        trd(c,0)
        if c+2<7: wdma(c+2)
        g("s_waitcnt lgkmcnt(6)")
        if c+2<7: xdma(c+2)
        if TA and c==0: touch()
        for ks in range(4):
            if ks<3: trd(c,ks+1); g("s_waitcnt lgkmcnt(6)")
            else: g("s_waitcnt lgkmcnt(0)")
            b=W+(ks&1)*12; x=vr(X+4*ks,4); f=(c==0 and ks==0)
            g(f"v_mfma_f32_32x32x16_bf16 {vr(Q,16)}, {vr(b,4)}, {x}, {'0' if f else vr(Q,16)}")
            g(f"v_mfma_f32_32x32x16_bf16 {vr(K,16)}, {vr(b+4,4)}, {x}, {'0' if f else vr(K,16)}")
            g(f"v_mfma_f32_32x32x16_bf16 {vr(V,16)}, {x}, {vr(b+8,4)}, {'0' if f else vr(V,16)}")
    g.stamp()
    import math
    sc=28**-0.5*math.log2(math.e)
    import struct
    g(f"s_mov_b32 s25, {hex(struct.unpack('I',struct.pack('f',sc))[0])}")
    g("""s_lshl_b32 s3, s16, 2
    s_add_u32 s3, s3, s18
    s_lshl_b32 s24, s17, 6
    s_add_u32 s3, s3, s24
    s_lshl_b32 s3, s3, 11
    v_lshlrev_b32 v1, 4, v0
    v_cmp_gt_u32 s[26:27], v0, 31
    v_and_b32 v10, 31, v0
    v_cmp_gt_u32 s[28:29], v10, 27
    v_cmp_eq_u32 vcc, 28, v10
    v_mov_b32 v11, 0x3f803f80
    v_mov_b32 v12, 0x3f80
    v_mov_b32 v13, 0
    v_cndmask_b32 v14, 0, v11, vcc
    s_nop 7""")
    for i in range(16): g(f"v_mul_f32 v{Q+i}, s25, v{Q+i}")
    for i in range(8): g(f"v_cvt_pk_bf16_f32 v{X+i}, v{Q+2*i}, v{Q+2*i+1}")
    for i in range(8): g(f"v_cvt_pk_bf16_f32 v{X+8+i}, v{K+2*i}, v{K+2*i+1}")
    for i in range(8): g(f"v_cvt_pk_bf16_f32 v{W+i}, v{V+2*i}, v{V+2*i+1}")
    g(f"v_cndmask_b32 v{X+6}, v{X+6}, v13, s[26:27]",f"v_cndmask_b32 v{X+7}, v{X+7}, v13, s[26:27]")
    g(f"v_cndmask_b32 v{X+14}, v{X+14}, v11, s[26:27]",f"v_cndmask_b32 v{X+15}, v{X+15}, v12, s[26:27]")
    for i in range(8): g(f"v_cndmask_b32 v{W+i}, v{W+i}, v14, s[28:29]")
    for (base,r) in ((QF,X),(KF,X+8),(VF,W)):
        g(f"s_add_u32 s24, s3, {base}")
        g(f"buffer_store_dwordx4 {vr(r,4)}, v1, s[12:15], s24 offen",f"buffer_store_dwordx4 {vr(r+4,4)}, v1, s[12:15], s24 offen offset:1024")
    g.end()

def misc(g):
    import os
    if int(os.environ.get('MP','0')): g('s_setprio %s'%os.environ['MP'])
    g.srd(4,0,2048*896); g.srd(8,80,896); g.srd(12,104,WSN); g.srd(16,72,448*896)
    g("""v_lshrrev_b32 v1, 6, v0
    v_and_b32 v0, 63, v0
    v_readfirstlane_b32 s20, v1""")
    g.srd_done()
    g("""v_lshrrev_b32 v2, 2, v0
    v_mul_u32_u24 v2, 896, v2
    v_and_b32 v3, 3, v0
    v_lshlrev_b32 v3, 4, v3
    v_add_u32 v2, v2, v3
    %s
    s_lshl_b32 s3, s3, 2
    s_add_u32 s3, s3, s20
    s_mul_i32 s21, s3, 16*896"""%(remap("s3","s2","s21") if int(os.environ.get('RM','1')) else "s_mov_b32 s3, s2"))
    for i in range(14):
        g(f"buffer_load_dwordx4 {vr(16+4*i,4)}, v2, s[4:7], s21 offen offset:{64*i}")
        g(f"buffer_load_dwordx4 {vr(80+4*i,4)}, v3, s[8:11], 0 offen offset:{64*i}")
    g("v_lshrrev_b32 v5, 5, v0","v_and_b32 v6, 31, v0","v_lshlrev_b32 v6, 1, v6","v_mul_u32_u24 v5, 4*896, v5","v_add_u32 v5, v5, v6","v_cmp_gt_u32 vcc, v0, 31","v_mov_b32 v7, 0x40000000")
    for s_ in range(2):
        for i in range(8):
            n=(i&3)+8*(i>>2)+16*s_
            g(f"v_add_u32 v{144+8*s_+i}, {n*896}, v5")
            if s_==1 and i>=4: g(f"v_cndmask_b32 v{144+8*s_+i}, v{144+8*s_+i}, v7, vcc")
    g("v_lshlrev_b32 v8, 4, v0", "s_and_b32 s22, s20, 1","s_cmp_eq_u32 s22, 0")
    l0=g.lab(); g(f"s_cbranch_scc1 {l0}")
    for i in range(8): g(f"v_mov_b32 v{144+i}, v{152+i}")
    g(f"{l0}:")
    for it in range(4):
        skip=g.lab()
        if it==3: g("s_cmp_ge_u32 s20, 2",f"s_cbranch_scc1 {skip}")
        g(f"""s_mul_i32 s23, s2, 14
        s_add_u32 s23, s23, s20
        s_add_u32 s23, s23, {4*it}
        s_lshr_b32 s24, s23, 1
        s_and_b32 s25, s24, 15
        s_lshr_b32 s24, s24, 4
        s_mul_i32 s25, s25, 28*896
        s_lshl_b32 s24, s24, 6
        s_add_u32 s25, s25, s24
        s_lshl_b32 s23, s23, 10
        s_add_u32 s{26+it}, s23, {WF}""")
        for i in range(8):
            g(f"buffer_load_ushort v{160+8*it+i}, v{144+i}, s[16:19], s25 offen")
        g(f"{skip}:")
    g.stamp()
    g("v_mov_b32 v9, 0","s_waitcnt vmcnt(24)"); g.stamp()
    for i in range(14):
        for k in range(4): g(f"v_dot2_f32_bf16 v9, v{16+4*i+k}, v{80+4*i+k}, v9")
    g("""s_nop 3
    v_add_f32 v9, v9, v9 quad_perm:[1,0,3,2] row_mask:0xf bank_mask:0xf
    s_nop 1
    v_add_f32 v9, v9, v9 quad_perm:[2,3,0,1] row_mask:0xf bank_mask:0xf
    v_cvt_pk_bf16_f32 v9, v9, v9
    v_and_b32 v9, 0xffff0000, v9
    v_mul_f32 v9, 0xbfb8aa3b, v9
    v_exp_f32 v9, v9
    s_nop 0
    v_add_f32 v9, 1.0, v9
    v_rcp_f32 v9, v9
    s_nop 0
    v_cvt_pk_bf16_f32 v9, v9, v9
    v_and_b32 v9, 0xffff0000, v9
    v_lshrrev_b32 v10, 2, v0
    v_lshlrev_b32 v10, 2, v10
    s_lshl_b32 s3, s3, 6""",
    f"s_add_u32 s3, s3, {GG}",
    "v_and_b32 v11, 3, v0","v_cmp_eq_u32 vcc, 0, v11","s_and_saveexec_b64 s[30:31], vcc",
    "buffer_store_dword v9, v10, s[12:15], s3 offen","s_mov_b64 exec, s[30:31]","s_waitcnt vmcnt(1)")
    for it in range(4):
        skip=g.lab()
        if it==3: g("s_cmp_ge_u32 s20, 2",f"s_cbranch_scc1 {skip}")
        for k in range(4): g(f"v_lshl_or_b32 v{16+4*it+k}, v{160+8*it+2*k+1}, 16, v{160+8*it+2*k}")
        g(f"buffer_store_dwordx4 {vr(16+4*it,4)}, v8, s[12:15], s{26+it} offen")
        g(f"{skip}:")
    g.end()
```

```python
import os
import sys,re
from g0 import *; from g1 import ssm1,ssm2; from g2 import attn,outk
def kern(name,body,vg,sg=102):
    g=G(); body(g)
    t=f".globl {name}\n.p2align 8\n.type {name},@function\n{name}:\n"+g.text()
    d=f""".amdhsa_kernel {name}
  .amdhsa_next_free_vgpr {vg}
  .amdhsa_next_free_sgpr {sg}
  .amdhsa_accum_offset {(vg+3)//4*4}
  .amdhsa_group_segment_fixed_size 0
  .amdhsa_kernarg_size 112
  .amdhsa_user_sgpr_count 2
  .amdhsa_user_sgpr_kernarg_segment_ptr 1
  .amdhsa_system_sgpr_workgroup_id_x 1
.end_amdhsa_kernel
"""
    return t,d
cnt=[0]; INFO=[]
def roles(rs):
    def body(g):
        g.n=cnt[0]; cnt[0]+=1000
        tot=0; labs=[]
        if G.prof: g("s_mov_b32 s101, s2","v_lshrrev_b32 v1, 6, v0","s_nop 1","v_readfirstlane_b32 s100, v1"); g.stamp(); g.pre=g.ns
        for c,fn in rs:
            labs.append(g.lab("R")); tot+=c
            g(f"s_cmp_lt_u32 s2, {tot}",f"s_cbranch_scc1 {labs[-1]}")
        g("s_endpgm")
        base=0
        for (c,fn),l in zip(rs,labs):
            g(f"{l}:")
            if G.prof: g.ns=1
            if base: g(f"s_sub_u32 s2, s2, {base}")
            n0=len(g.L); fn(g); base+=c
            if G.prof: INFO[-1].append((fn.__name__,c,1+sum('s_memrealtime' in x for x in g.L[n0:])))
    return body,sum(c for c,_ in rs)
def build(cfg="A"):
    src=open("cdna_kernels/"+NAME+".s.ref").read()
    head=src[:src.index("; @launch")]
    head=head[:head.index("; Override launch geometry")]
    if cfg=="C": ks=[("ka",[(256,qkv),(32,misc),(224,ssm)],192,81920),("kb",[(256,attn)],216,65536),("kc",[(224,outk)],128,131072)]
    elif cfg=="D": ks=[("ka",[(224,ssm1),(256,qkv),(32,misc)],192,81920),("kb",[(256,attn),(224,ssm2)],216,81920),("kc",[(224,outk)],128,131072)]
    elif cfg=="F": ks=[("ka",[(224,ssm1),(256,qkv),(32,misc)],192,81920),("kb",[(224,ssm2),(256,attn)],216,81920),("kc",[(224,outk)],128,131072)]
    elif cfg=="G": ks=[("ka",[(224,ssm1),(256,qkv)],192,81920),("kb",[(256,attn),(224,ssm2),(32,misc)],216,81920),("kc",[(224,outk)],128,131072)]
    elif cfg=="E": ks=[("ka",[(224,ssm1)],192,81920),("kq",[(256,qkv),(32,misc)],192,int(os.environ.get("QL","81920"))),("ks",[(224,ssm2)],216,81920),("kb",[(256,attn)],216,81920),("kc",[(224,outk)],128,131072)]
    elif cfg=="A": ks=[("ka",[(224,ssm),(256,qkv),(32,misc)],128 if False else 192,81920),("kb",[(256,attn)],216,65536),("kc",[(224,outk)],128,131072)]
    elif cfg=="S": ks=[("ks",[(224,ssm)],192,81920),("ka",[(256,qkv),(32,misc)],192,81920),("kb",[(256,attn)],216,65536),("kc",[(224,outk)],128,131072)]
    else: ks=[("ka",[(256,qkv),(32,misc)],192,81920),("kb",[(256,attn),(224,ssm)],216,81920),("kc",[(224,outk)],128,131072)]
    out=head; ts=[];ds=[]
    for nm,rs,vg,lds in ks:
        body,n=roles(rs); name=f"gm_{nm}_kernel"; G.kid=len(ts); INFO.append([])
        out+=f"; @launch kernel={name} grid=({n},1,1) block=(256,1,1) lds={lds}\n"
        t,d=kern(name,body,vg); ts.append(t); ds.append(d)
    out+='.amdgcn_target "amdgcn-amd-amdhsa--gfx950"\n.text\n'+"".join(ts)+'.section .rodata,"a"\n'+"".join(".p2align 6\n"+d for d in ds)
    return out
if __name__=="__main__":
    if len(sys.argv)>3 and sys.argv[3]=="prof": G.prof=True
    cfg=sys.argv[1] if len(sys.argv)>1 else "A"
    txt=build(cfg)
    import json; json.dump(INFO,open("roles.json","w"))
    open(sys.argv[2] if len(sys.argv)>2 else "k.s","w").write(txt)
```

```python
NAME="gated_mix__ssm_conv_s4d__softmax_full_mha__prompt"
QF,KF,VF,OF,WF,GG,AY=0,0x200000,0x400000,0x600000,0x800000,0x880000,0x900000
WSN=0x1000000
class G:
    def __init__(s): s.L=[]; s.n=0
    def __call__(s,*ls):
        for l in ls:
            for x in l.split('\n'):
                x=x.strip()
                if x: s.L.append(x)
    def lab(s,p='L'): s.n+=1; return f"{p}_{s.n}"
    def srd(s,r,karg,nrec):
        s(f"s_load_dwordx2 s[{r}:{r+1}], s[0:1], {karg}")
        s.post=getattr(s,'post',[])+[f"s_mov_b32 s{r+2}, {hex(nrec)}",f"s_mov_b32 s{r+3}, 0x20000"]
    def srd_done(s):
        s("s_waitcnt lgkmcnt(0)"); s(*s.post); s.post=[]
    prof=False; kid=0
    def stamp(s):
        if not G.prof: return
        s.ns=getattr(s,'ns',0); assert s.ns<14
        s(f"s_memrealtime s[{64+2*s.ns}:{65+2*s.ns}]","s_waitcnt lgkmcnt(0)"); s.ns+=1
    def end(s):
        if G.prof:
            s("s_waitcnt vmcnt(0)"); s.stamp()
            s("s_load_dwordx2 s[60:61], s[0:1], 104","s_mov_b32 s62, 0x2000000","s_mov_b32 s63, 0x20000","s_waitcnt lgkmcnt(0)",
              "v_mbcnt_lo_u32_b32 v1, -1, 0","v_mbcnt_hi_u32_b32 v1, -1, v1","v_mov_b32 v2, 0")
            for i in range(s.ns): s(f"v_mov_b32 v3, s{64+2*i}",f"v_cmp_eq_u32 vcc, {i}, v1","s_nop 1","v_cndmask_b32 v2, v2, v3, vcc")
            s("s_getreg_b32 s4, hwreg(HW_REG_HW_ID)","s_getreg_b32 s5, hwreg(HW_REG_XCC_ID)")
            for i,r in ((14,4),(15,5)): s(f"v_mov_b32 v3, s{r}",f"v_cmp_eq_u32 vcc, {i}, v1","s_nop 1","v_cndmask_b32 v2, v2, v3, vcc")
            s("s_lshl_b32 s3, s101, 2","s_add_u32 s3, s3, s100","s_lshl_b32 s3, s3, 6",f"s_add_u32 s3, s3, {0x1000000+G.kid*0x40000}",
              "v_lshlrev_b32 v1, 2, v1","s_mov_b64 exec, 0xffff","buffer_store_dword v2, v1, s[60:63], s3 offen")
            s.ns=0
        s("s_endpgm")
    def text(s): return "\n".join(("" if (x.endswith(':') or x.startswith('.')) else "    ")+x for x in s.L)+"\n"
def vr(a,n): return f"v[{a}:{a+n-1}]"
def dma(g,srd,voff,soff,m0expr):
    g(m0expr,"s_nop 0",f"buffer_load_dwordx4 v{voff}, s[{srd}:{srd+3}], {soff} offen lds")

def remap(d,s,t):
    return f"""s_and_b32 {d}, {s}, 3
    s_lshl_b32 {d}, {d}, 3
    s_and_b32 {t}, {s}, 4
    s_or_b32 {d}, {d}, {t}
    s_bfe_u32 {t}, {s}, 0x20003
    s_or_b32 {d}, {d}, {t}"""
def qkv(g):
    import os, math, struct
    PD=2; NX=PD; NW=PD+1; WB=NX*16384
    g.srd(4,0,2048*896); g.srd(8,64,448*2688); g.srd(12,104,WSN)
    g("""s_and_b32 s16, s2, 3
    s_lshl_b32 s16, s16, 2
    s_lshr_b32 s3, s2, 3
    s_and_b32 s17, s3, 3
    s_add_u32 s16, s16, s17
    s_lshr_b32 s17, s3, 2
    s_and_b32 s3, s2, 4
    s_lshl_b32 s3, s3, 1
    s_add_u32 s17, s17, s3
    v_lshrrev_b32 v1, 6, v0
    v_and_b32 v0, 63, v0
    v_readfirstlane_b32 s18, v1""")
    g.srd_done()
    g("""v_lshrrev_b32 v10, 3, v0
    v_mul_u32_u24 v2, 896, v10
    v_lshrrev_b32 v10, 4, v0
    v_xor_b32 v10, v10, v0
    v_and_b32 v10, 7, v10
    v_lshl_add_u32 v2, v10, 4, v2
    v_xor_b32 v3, 64, v2
    s_lshl_b32 s3, s16, 2
    s_add_u32 s3, s3, s18
    s_mul_i32 s19, s3, 32*896
    s_mul_i32 s20, s18, 16*2688
    s_mul_i32 s21, s17, 168
    s_add_u32 s20, s20, s21
    s_lshl_b32 s22, s18, 12
    s_mul_i32 s23, s18, 3072
    s_add_u32 s23, s23, %d"""%WB)
    WV=(4,104,105)
    for j in range(3):
        g(f"v_add_u32 v10, {64*j}, v0","v_mul_u32_u24 v11, 43691, v10","v_lshrrev_b32 v11, 19, v11","v_mul_u32_u24 v12, 12, v11","v_sub_u32 v10, v10, v12",
          "v_mul_u32_u24 v11, 2688, v11",f"v_lshl_add_u32 v{WV[j]}, v10, 4, v11")
    def xdma(c):
        for j in range(4):
            g(f"s_add_u32 s24, s19, {8*j*896+c*128}")
            dma(g,4,2+(j&1),"s24",f"s_add_u32 m0, s22, {(c%NX)*16384+j*1024}")
    def wdma(c):
        g(f"s_add_u32 s24, s20, {c*64*2688}")
        for j in range(3):
            dma(g,8,WV[j],"s24",f"s_add_u32 m0, s23, {(c%NW)*12288+j*1024}")
    for c in range(PD): xdma(c); wdma(c)
    g("""v_and_b32 v10, 31, v0
    v_lshrrev_b32 v11, 5, v0
    v_lshrrev_b32 v12, 1, v10
    v_and_b32 v12, 7, v12
    v_xor_b32 v12, v12, v11
    v_lshlrev_b32 v12, 4, v12
    v_lshl_add_u32 v5, v10, 7, v12
    v_add_u32 v5, s22, v5
    v_xor_b32 v6, 32, v5
    v_xor_b32 v7, 64, v5
    v_xor_b32 v8, 96, v5
    v_mul_u32_u24 v9, 1536, v11
    v_bfe_u32 v12, v0, 2, 2
    v_mul_u32_u24 v12, 192, v12
    v_add_u32 v9, v9, v12
    v_bfe_u32 v12, v0, 4, 1
    v_lshl_add_u32 v9, v12, 5, v9
    v_and_b32 v12, 3, v0
    v_lshl_add_u32 v9, v12, 3, v9
    v_add_u32 v9, %d, v9"""%WB)
    ACC,X,W=16,64,80
    def trd(c,ks):
        b=W+(ks&1)*12
        for i in range(3):
            o=(c%NW)*12288+i*56+ks*3072
            g(f"ds_read_b64_tr_b16 {vr(b+4*i,2)}, v9 offset:{o}",f"ds_read_b64_tr_b16 {vr(b+4*i+2,2)}, v9 offset:{o+768}")
    lB=g.lab(); lC=g.lab(); lE=g.lab()
    g("s_cmp_eq_u32 s17, 10",f"s_cbranch_scc1 {lB}","s_cmp_gt_u32 s17, 10",f"s_cbranch_scc1 {lC}")
    ns0=getattr(g,'ns',0)
    for var,isv in enumerate(((0,0,0),(0,0,1),(1,1,1))):
        g.ns=ns0
        if var==1: g(f"{lB}:")
        if var==2: g(f"{lC}:")
        for c in range(7):
            if c==0: g.stamp()
            g(f"s_waitcnt vmcnt({7*min(PD-1,6-c)})","s_barrier")
            if c in (0,1,3,6): g.stamp()
            for ks in range(4): g(f"ds_read_b128 {vr(X+4*ks,4)}, v{5+ks} offset:{(c%NX)*16384}")
            trd(c,0)
            if c+PD<7: wdma(c+PD)
            g("s_waitcnt lgkmcnt(6)")
            if c+PD<7: xdma(c+PD)
            for ks in range(4):
                if ks<3: trd(c,ks+1); g("s_waitcnt lgkmcnt(6)")
                else: g("s_waitcnt lgkmcnt(0)")
                b=W+(ks&1)*12; x=vr(X+4*ks,4); f=(c==0 and ks==0)
                for i in range(3):
                    a_=vr(ACC+16*i,16); w_=vr(b+4*i,4)
                    g(f"v_mfma_f32_32x32x16_bf16 {a_}, {x if isv[i] else w_}, {w_ if isv[i] else x}, {'0' if f else a_}")
        if var<2: g(f"s_branch {lE}")
    g(f"{lE}:")
    g.stamp()
    sc=28**-0.5*math.log2(math.e)
    g(f"s_mov_b32 s25, {hex(struct.unpack('I',struct.pack('f',sc))[0])}")
    g("""s_lshl_b32 s3, s16, 2
    s_add_u32 s3, s3, s18
    s_lshl_b32 s3, s3, 11
    s_mul_i32 s30, s17, 3
    s_lshl_b32 s24, s30, 17
    s_add_u32 s3, s3, s24
    v_lshlrev_b32 v1, 4, v0
    v_cmp_gt_u32 s[26:27], v0, 31
    v_and_b32 v10, 31, v0
    v_cmp_gt_u32 s[28:29], v10, 27
    v_cmp_eq_u32 vcc, 28, v10
    v_mov_b32 v11, 0x3f803f80
    v_mov_b32 v12, 0x3f80
    v_mov_b32 v13, 0
    v_cndmask_b32 v14, 0, v11, vcc
    s_nop 7""")
    for i in range(3):
        A=ACC+16*i; P=X+8*i
        lk=g.lab(); lv=g.lab(); ld=g.lab()
        g(f"s_add_u32 s31, s30, {i}","s_cmp_ge_u32 s31, 32",f"s_cbranch_scc1 {lv}","s_cmp_ge_u32 s31, 16",f"s_cbranch_scc1 {lk}")
        for r in range(16): g(f"v_mul_f32 v{A+r}, s25, v{A+r}")
        for r in range(8): g(f"v_cvt_pk_bf16_f32 v{P+r}, v{A+2*r}, v{A+2*r+1}")
        g(f"v_cndmask_b32 v{P+6}, v{P+6}, v13, s[26:27]",f"v_cndmask_b32 v{P+7}, v{P+7}, v13, s[26:27]",f"s_branch {ld}",f"{lk}:")
        for r in range(8): g(f"v_cvt_pk_bf16_f32 v{P+r}, v{A+2*r}, v{A+2*r+1}")
        g(f"v_cndmask_b32 v{P+6}, v{P+6}, v11, s[26:27]",f"v_cndmask_b32 v{P+7}, v{P+7}, v12, s[26:27]",f"s_branch {ld}",f"{lv}:")
        for r in range(8): g(f"v_cvt_pk_bf16_f32 v{P+r}, v{A+2*r}, v{A+2*r+1}")
        for r in range(8): g(f"v_cndmask_b32 v{P+r}, v{P+r}, v14, s[28:29]")
        g(f"{ld}:",f"s_add_u32 s24, s3, {QF+(i<<17)}")
        g(f"buffer_store_dwordx4 {vr(P,4)}, v1, s[12:15], s24 offen",f"buffer_store_dwordx4 {vr(P+4,4)}, v1, s[12:15], s24 offen offset:1024")
    g.end()

def misc(g):
    import os
    if int(os.environ.get('MP','0')): g('s_setprio %s'%os.environ['MP'])
    g.srd(4,0,2048*896); g.srd(8,80,896); g.srd(12,104,WSN); g.srd(16,72,448*896)
    g("""v_lshrrev_b32 v1, 6, v0
    v_and_b32 v0, 63, v0
    v_readfirstlane_b32 s20, v1""")
    g.srd_done()
    g("""v_lshrrev_b32 v2, 3, v0
    v_mul_u32_u24 v2, 896, v2
    v_and_b32 v3, 7, v0
    v_lshlrev_b32 v3, 4, v3
    v_add_u32 v2, v2, v3
    %s
    s_lshl_b32 s3, s3, 2
    s_add_u32 s3, s3, s20
    s_mul_i32 s21, s3, 16*896
    s_add_u32 s22, s21, 8*896"""%(remap("s3","s2","s21") if int(os.environ.get('RM','1')) else "s_mov_b32 s3, s2"))
    for i in range(7):
        g(f"buffer_load_dwordx4 {vr(16+4*i,4)}, v2, s[4:7], s21 offen offset:{128*i}")
        g(f"buffer_load_dwordx4 {vr(80+4*i,4)}, v3, s[8:11], 0 offen offset:{128*i}")
        g(f"buffer_load_dwordx4 {vr(44+4*i,4)}, v2, s[4:7], s22 offen offset:{128*i}")
    g("v_lshrrev_b32 v5, 5, v0","v_and_b32 v6, 31, v0","v_lshlrev_b32 v6, 1, v6","v_mul_u32_u24 v5, 4*896, v5","v_add_u32 v5, v5, v6","v_cmp_gt_u32 vcc, v0, 31","v_mov_b32 v7, 0x40000000")
    for s_ in range(2):
        for i in range(8):
            n=(i&3)+8*(i>>2)+16*s_
            g(f"v_add_u32 v{144+8*s_+i}, {n*896}, v5")
            if s_==1 and i>=4: g(f"v_cndmask_b32 v{144+8*s_+i}, v{144+8*s_+i}, v7, vcc")
    g("v_lshlrev_b32 v8, 4, v0", "s_and_b32 s22, s20, 1","s_cmp_eq_u32 s22, 0")
    l0=g.lab(); g(f"s_cbranch_scc1 {l0}")
    for i in range(8): g(f"v_mov_b32 v{144+i}, v{152+i}")
    g(f"{l0}:")
    for it in range(4):
        skip=g.lab()
        if it==3: g("s_cmp_ge_u32 s20, 2",f"s_cbranch_scc1 {skip}")
        g(f"""s_mul_i32 s23, s2, 14
        s_add_u32 s23, s23, s20
        s_add_u32 s23, s23, {4*it}
        s_lshr_b32 s24, s23, 1
        s_and_b32 s25, s24, 15
        s_lshr_b32 s24, s24, 4
        s_mul_i32 s25, s25, 28*896
        s_lshl_b32 s24, s24, 6
        s_add_u32 s25, s25, s24
        s_lshl_b32 s23, s23, 10
        s_add_u32 s{26+it}, s23, {WF}""")
        for i in range(8):
            g(f"buffer_load_ushort v{160+8*it+i}, v{144+i}, s[16:19], s25 offen")
        g(f"{skip}:")
    g.stamp()
    g("v_mov_b32 v9, 0","v_mov_b32 v10, 0","v_and_b32 v11, 1, v0","v_cmp_eq_u32 s[30:31], 1, v11","s_waitcnt vmcnt(24)"); g.stamp()
    for i in range(7):
        for k in range(4): g(f"v_dot2_f32_bf16 v9, v{16+4*i+k}, v{80+4*i+k}, v9",f"v_dot2_f32_bf16 v10, v{44+4*i+k}, v{80+4*i+k}, v10")
    g("s_nop 3")
    for m in ("quad_perm:[1,0,3,2]","quad_perm:[2,3,0,1]","row_half_mirror"):
        g(f"v_add_f32 v9, v9, v9 {m} row_mask:0xf bank_mask:0xf",f"v_add_f32 v10, v10, v10 {m} row_mask:0xf bank_mask:0xf","s_nop 1")
    g("""v_cndmask_b32 v9, v9, v10, s[30:31]
    v_cvt_pk_bf16_f32 v9, v9, v9
    v_and_b32 v9, 0xffff0000, v9
    v_mul_f32 v9, 0xbfb8aa3b, v9
    v_exp_f32 v9, v9
    s_nop 0
    v_add_f32 v9, 1.0, v9
    v_rcp_f32 v9, v9
    s_nop 0
    v_cvt_pk_bf16_f32 v9, v9, v9
    v_and_b32 v9, 0xffff0000, v9
    v_lshrrev_b32 v10, 3, v0
    v_lshl_add_u32 v10, v11, 3, v10
    v_lshlrev_b32 v10, 2, v10
    s_lshl_b32 s3, s3, 6""",
    f"s_add_u32 s3, s3, {GG}",
    "v_and_b32 v11, 7, v0","v_cmp_gt_u32 vcc, 2, v11","s_and_saveexec_b64 s[30:31], vcc",
    "buffer_store_dword v9, v10, s[12:15], s3 offen","s_mov_b64 exec, s[30:31]","s_waitcnt vmcnt(1)")
    for it in range(4):
        skip=g.lab()
        if it==3: g("s_cmp_ge_u32 s20, 2",f"s_cbranch_scc1 {skip}")
        for k in range(4): g(f"v_lshl_or_b32 v{16+4*it+k}, v{160+8*it+2*k+1}, 16, v{160+8*it+2*k}")
        g(f"buffer_store_dwordx4 {vr(16+4*it,4)}, v8, s[12:15], s{26+it} offen")
        g(f"{skip}:")
    g.end()
```

```python
import os
import sys,re
from g0 import *; from g1 import ssm1,ssm2; from g2 import attn,outk
def kern(name,body,vg,sg=102):
    g=G(); body(g)
    t=f".globl {name}\n.p2align 8\n.type {name},@function\n{name}:\n"+g.text()
    d=f""".amdhsa_kernel {name}
  .amdhsa_next_free_vgpr {vg}
  .amdhsa_next_free_sgpr {sg}
  .amdhsa_accum_offset {(vg+3)//4*4}
  .amdhsa_group_segment_fixed_size 0
  .amdhsa_kernarg_size 112
  .amdhsa_user_sgpr_count 2
  .amdhsa_user_sgpr_kernarg_segment_ptr 1
  .amdhsa_system_sgpr_workgroup_id_x 1
.end_amdhsa_kernel
"""
    return t,d
cnt=[0]; INFO=[]
def roles(rs):
    def body(g):
        g.n=cnt[0]; cnt[0]+=1000
        tot=0; labs=[]
        if G.prof: g("s_mov_b32 s101, s2","v_lshrrev_b32 v1, 6, v0","s_nop 1","v_readfirstlane_b32 s100, v1"); g.stamp(); g.pre=g.ns
        for c,fn in rs:
            labs.append(g.lab("R")); tot+=c
            g(f"s_cmp_lt_u32 s2, {tot}",f"s_cbranch_scc1 {labs[-1]}")
        g("s_endpgm")
        base=0
        for (c,fn),l in zip(rs,labs):
            g(f"{l}:")
            if G.prof: g.ns=1
            if base: g(f"s_sub_u32 s2, s2, {base}")
            n0=len(g.L); fn(g); base+=c
            if G.prof: INFO[-1].append((fn.__name__,c,1+sum('s_memrealtime' in x for x in g.L[n0:])))
    return body,sum(c for c,_ in rs)
def build(cfg="A"):
    src=open("cdna_kernels/"+NAME+".s.ref").read()
    head=src[:src.index("; @launch")]
    head=head[:head.index("; Override launch geometry")]
    if cfg=="C": ks=[("ka",[(256,qkv),(32,misc),(224,ssm)],192,81920),("kb",[(256,attn)],216,65536),("kc",[(224,outk)],128,131072)]
    elif cfg=="D": ks=[("ka",[(224,ssm1),(256,qkv),(32,misc)],192,81920),("kb",[(256,attn),(224,ssm2)],216,81920),("kc",[(224,outk)],128,131072)]
    elif cfg=="F": ks=[("ka",[(224,ssm1),(256,qkv),(32,misc)],192,81920),("kb",[(224,ssm2),(256,attn)],216,81920),("kc",[(224,outk)],128,131072)]
    elif cfg=="G": ks=[("ka",[(224,ssm1),(256,qkv)],192,81920),("kb",[(256,attn),(224,ssm2),(32,misc)],216,81920),("kc",[(224,outk)],128,131072)]
    elif cfg=="E": ks=[("ka",[(224,ssm1)],192,81920),("kq",[(256,qkv),(32,misc)],192,int(os.environ.get("QL","81920"))),("ks",[(224,ssm2)],216,81920),("kb",[(256,attn)],216,81920),("kc",[(224,outk)],128,131072)]
    elif cfg=="A": ks=[("ka",[(224,ssm),(256,qkv),(32,misc)],128 if False else 192,81920),("kb",[(256,attn)],216,65536),("kc",[(224,outk)],128,131072)]
    elif cfg=="S": ks=[("ks",[(224,ssm)],192,81920),("ka",[(256,qkv),(32,misc)],192,81920),("kb",[(256,attn)],216,65536),("kc",[(224,outk)],128,131072)]
    else: ks=[("ka",[(256,qkv),(32,misc)],192,81920),("kb",[(256,attn),(224,ssm)],216,81920),("kc",[(224,outk)],128,131072)]
    out=head; ts=[];ds=[]
    for nm,rs,vg,lds in ks:
        body,n=roles(rs); name=f"gm_{nm}_kernel"; G.kid=len(ts); INFO.append([])
        out+=f"; @launch kernel={name} grid=({n},1,1) block=(256,1,1) lds={lds}\n"
        t,d=kern(name,body,vg); ts.append(t); ds.append(d)
    out+='.amdgcn_target "amdgcn-amd-amdhsa--gfx950"\n.text\n'+"".join(ts)+'.section .rodata,"a"\n'+"".join(".p2align 6\n"+d for d in ds)
    return out
if __name__=="__main__":
    if len(sys.argv)>3 and sys.argv[3]=="prof": G.prof=True
    cfg=sys.argv[1] if len(sys.argv)>1 else "A"
    txt=build(cfg)
    import re
    cur=None; o=[]
    for l in txt.split('\n'):
        m=re.match(r'gm_(\w+)_kernel:',l.strip())
        if m: cur=m.group(1)
        if 'buffer_store' in l and cur!='kc' and 's[60:63]' not in l and not os.environ.get('NOSC'): l=l.rstrip()+' sc1'
        o.append(l.rstrip())
    txt='\n'.join(o)
    import json; json.dump(INFO,open("roles.json","w"))
    open(sys.argv[2] if len(sys.argv)>2 else "k.s","w").write(txt)
```
